```python
import torch

def _softmax(x, axis=-1):
    return torch.softmax(x, dim=axis)
def _gelu(x):
    return torch.nn.functional.gelu(x, approximate="tanh")
def _silu(x):
    return torch.nn.functional.silu(x)
def _sigmoid(x):
    return torch.sigmoid(x)
def _layernorm(x, axis=-1, eps=1e-5):
    m = x.mean(dim=axis, keepdim=True)
    v = x.var(dim=axis, keepdim=True, unbiased=False)
    return (x - m) / torch.sqrt(v + eps)
def _scatter_add(tgt, idx, src, axis=0):
    return tgt.clone().index_add_(axis, idx, src)
def _segment_sum(src, seg, n):
    out = torch.zeros((n,) + src.shape[1:], dtype=src.dtype)
    return out.index_add_(0, seg, src)
def _pad(x, pw):
    flat = tuple(v for pair in reversed(pw) for v in pair)
    return torch.nn.functional.pad(x, flat)

kernel_name = 'standalone__paged_block_table_kv_pagedattention__sampling'

def setup_inputs():

    _w = (lambda a: (lambda t: t.to(torch.bfloat16) if t.is_floating_point() else t)(torch.as_tensor(a)))
    B, Hq, Hkv, Sq, Skv, D = 32, 16, 8, 1, 2048, 256
    bs = 16
    nbps = max(1, Skv // bs)
    num_phys = B * nbps + 4
    bt = torch.randperm(num_phys)[: B * nbps].reshape(B, nbps).to(torch.int64)
    cl = (nbps * bs - (torch.arange(1, B + 1, dtype=torch.int64) * 2654435761) % max(1, nbps * bs // 2)).to(torch.int64)
    return {
        "q": _w((lambda *s: torch.randn(*s, dtype=torch.bfloat16) * 0.8)(B, Hq, Sq, D)),
        "k_cache": _w((lambda *s: torch.randn(*s, dtype=torch.bfloat16) * 0.8)(num_phys, bs, Hkv, D)),
        "v_cache": _w((lambda *s: torch.randn(*s, dtype=torch.bfloat16) * 0.05)(num_phys, bs, Hkv, D)),
        "block_table": _w(bt),
        "context_lens": _w(cl),
    }

def reference(q, k_cache, v_cache, block_table, context_lens):
    B, Hq, Sq, D = q.shape
    bs = k_cache.shape[1]
    Hkv = k_cache.shape[2]
    nbps = block_table.shape[1]
    Skv = nbps * bs
    bt = block_table.reshape(-1)
    k = (lambda x, *d: x.permute(*d))(k_cache[bt].reshape(B, Skv, Hkv, D), 0, 2, 1, 3)
    v = (lambda x, *d: x.permute(*d))(v_cache[bt].reshape(B, Skv, Hkv, D), 0, 2, 1, 3)
    g = Hq // Hkv
    qg = q.reshape(B, Hkv, g, Sq, D)
    scores = torch.einsum("bhgqd,bhkd->bhgqk", qg, k) * (D ** -0.5)
    pos = torch.arange(Skv)
    msk = pos[None, :] < context_lens[:, None]
    scores = torch.where(msk[:, None, None, None, :], scores, -1e9)
    p = _softmax(scores, axis=-1)
    out = torch.einsum("bhgqk,bhkd->bhgqd", p, v)
    return out.reshape(B, Hq, Sq, D)
```

```python
import sys, struct
out = sys.argv[1] if len(sys.argv) > 1 else 'standalone__paged_block_table_kv_pagedattention__sampling.s'
OPT = dict(nt='nt', nocompute=0)
for a in sys.argv[2:]:
    k, v = a.split('='); OPT[k] = v
NT = OPT['nt'].replace('+', ' ')
if NT == 'none': NT = ''
KN = 'standalone__paged_block_table_kv_pagedattention__sampling_kernel'
L = []
def A(s): L.append('    ' + s)
def LB(s): L.append(s + ':')
def C(s): L.append('    ; ' + s)
def f32(x): return '0x%08x' % struct.unpack('<I', struct.pack('<f', x))[0]

NWG = 256
KV_BYTES = 4100 * 65536
WS_BYTES = 1074790400
LDS_BT = 0
LDS_K = 16384
KSLOT = 8448
LDS_Q = LDS_K + 8 * KSLOT
LDS_TOTAL = LDS_Q + 8 * 1024
STATS = 0x800000
OOB_KV = 0x20000000
OOB_WS = 0x60000000
SCALE = 1.4426950408889634 / 16.0

sK, sV, sQ, sWS, sDBG, sOUT, sBT, sCL = 4, 8, 12, 16, 20, 24, 28, 32
def srd(b): return f's[{b}:{b+3}]'
KA = 36
s_h, s_f, s_e, s_b, s_blk, s_nb, s_cl, s_c = 52, 53, 54, 55, 56, 57, 58, 59
s_nbb, s_nblk, s_nxt, s_t0, s_t1, s_t2, s_ldsK, s_ldsQ = 60, 61, 62, 63, 64, 65, 66, 67
s_seg, s_pend, s_pendb, s_hoff, s_T, s_inc, s_sel0, s_sel1 = 68, 69, 70, 71, 72, 73, 74, 75
s_shift, s_n, s_slot, s_k0, s_i, s_t3 = 76, 77, 78, 79, 80, 81
def S(x): return f's{x}'
vLane, vKoff, vVoff, vKrd, vQrd, vQoff, vTok, vPoff = 0, 1, 2, 3, 4, 5, 6, 7
vNb, vCl, vSc, vP, vPend, vWf, vCnt, vRet = 8, 9, 10, 11, 12, 13, 14, 15
vSegB, vM, vL, vNegInf, vT0, vT1, vT2, vT3 = 16, 17, 18, 19, 20, 21, 22, 23
vS = 24
vPk = 28
vBTv, vMn = 30, 31
vQ = 32
vKf = 64
vV = 96
vAcc = 128
vOutOff, vStOff, vT4, vT5 = 160, 161, 162, 163
NVGPR = 164
def V(x): return f'v{x}'
def VR(x, n): return f'v[{x}:{x+n-1}]'

hdr = open('standalone__paged_block_table_kv_pagedattention__sampling.s.ref').read().split('\n')
for line in hdr:
    if line.startswith('; @launch'):
        L.append(f'; @launch grid=({NWG},1,1) block=(512,1,1) lds={LDS_TOTAL}')
        break
    L.append(line)
L.append('.amdgcn_target "amdgcn-amd-amdhsa--gfx950"')
L.append('.text')
L.append(f'.globl {KN}')
L.append('.p2align 8')
L.append(f'.type {KN},@function')
LB(KN)
A(f's_cmp_ge_u32 s2, {NWG}')
A('s_cbranch_scc1 L_end')
A(f's_load_dwordx16 s[{KA}:{KA+15}], s[0:1], 0')
A(f'v_lshrrev_b32 {V(vT0)}, 6, v0')
A(f'v_and_b32 {V(vLane)}, 63, v0')
A(f'v_readfirstlane_b32 {S(s_h)}, {V(vT0)}')
C('lane constants')
A(f'v_lshrrev_b32 {V(vT0)}, 5, {V(vLane)}')
A(f'v_and_b32 {V(vT1)}, 31, {V(vLane)}')
A(f'v_xor_b32 {V(vT2)}, {V(vT1)}, {V(vT0)}')
A(f'v_lshlrev_b32 {V(vT2)}, 4, {V(vT2)}')
A(f'v_lshl_add_u32 {V(vKoff)}, {V(vT0)}, 12, {V(vT2)}')
A(f'v_lshlrev_b32 {V(vT2)}, 4, {V(vT1)}')
A(f'v_lshl_add_u32 {V(vVoff)}, {V(vT0)}, 15, {V(vT2)}')
A(f'v_lshl_add_u32 {V(vOutOff)}, {V(vT0)}, 9, {V(vT2)}')
A(f'v_lshlrev_b32 {V(vT2)}, 5, {V(vT1)}')
A(f'v_lshl_add_u32 {V(vPoff)}, {V(vT0)}, 10, {V(vT2)}')
A(f'v_lshlrev_b32 {V(vQoff)}, 4, {V(vLane)}')
A(f'v_lshrrev_b32 {V(vT0)}, 4, {V(vLane)}')
A(f'v_lshlrev_b32 {V(vTok)}, 2, {V(vT0)}')
A(f'v_and_b32 {V(vT1)}, 1, {V(vLane)}')
A(f'v_xor_b32 {V(vT2)}, {V(vT0)}, {V(vT1)}')
A(f'v_lshlrev_b32 {V(vT2)}, 4, {V(vT2)}')
A(f'v_lshl_add_u32 {V(vT2)}, {V(vT1)}, 9, {V(vT2)}')
A(f'v_bfe_u32 {V(vT3)}, {V(vLane)}, 1, 3')
A(f'v_mul_u32_u24 {V(vT3)}, 1056, {V(vT3)}')
A(f's_mul_i32 {S(s_ldsK)}, {S(s_h)}, {KSLOT}')
A(f's_add_u32 {S(s_ldsK)}, {S(s_ldsK)}, {LDS_K}')
A(f's_lshl_b32 {S(s_ldsQ)}, {S(s_h)}, 10')
A(f's_add_u32 {S(s_ldsQ)}, {S(s_ldsQ)}, {LDS_Q}')
A(f'v_add3_u32 {V(vKrd)}, {V(vT2)}, {V(vT3)}, {S(s_ldsK)}')
A(f'v_lshlrev_b32 {V(vT2)}, 4, {V(vT0)}')
A(f'v_lshl_add_u32 {V(vT2)}, {V(vT1)}, 9, {V(vT2)}')
A(f'v_add_u32 {V(vQrd)}, {S(s_ldsQ)}, {V(vT2)}')
A(f'v_mov_b32 {V(vNegInf)}, 0xff800000')
A(f's_lshl_b32 {S(s_hoff)}, {S(s_h)}, 9')
A(f's_mov_b32 {S(s_sel0)}, 0x05040100')
A(f's_mov_b32 {S(s_sel1)}, 0x07060302')
A(f's_and_b32 {S(s_shift)}, {S(s_h)}, 3')
A(f's_lshl_b32 {S(s_shift)}, {S(s_shift)}, 3')
A(f's_lshl_b32 {S(s_inc)}, 1, {S(s_shift)}')
A(f's_mov_b32 {S(s_seg)}, 0')
A(f's_mov_b32 {S(s_pend)}, 0')
A(f'v_lshlrev_b32 {V(vT0)}, 2, {V(vLane)}')
A(f's_lshl_b32 {S(s_t0)}, {S(s_h)}, 11')
A('s_waitcnt lgkmcnt(0)')
def mksrd(b, ka, nbytes):
    A(f's_mov_b32 s{b}, s{KA+ka}')
    A(f's_and_b32 s{b+1}, s{KA+ka+1}, 0xffff')
    A(f's_mov_b32 s{b+2}, {nbytes}')
    A(f's_mov_b32 s{b+3}, 0x20000')
mksrd(sCL, 8, 128)
mksrd(sBT, 6, 16384)
A(f'buffer_load_dword {V(vCl)}, {V(vT0)}, {srd(sCL)}, 0 offen')
A(f's_mov_b32 m0, {S(s_t0)}')
mksrd(sK, 2, KV_BYTES)
A(f'buffer_load_dwordx4 {V(vQoff)}, {srd(sBT)}, {S(s_t0)} offen lds')
A(f'buffer_load_dwordx4 {V(vQoff)}, {srd(sBT)}, {S(s_t0)} offen offset:1024 lds')
mksrd(sV, 4, KV_BYTES)
mksrd(sQ, 0, 32 * 16 * 512)
mksrd(sWS, 14, WS_BYTES)
mksrd(sDBG, 12, 256)
mksrd(sOUT, 10, 32 * 16 * 512)
A('s_waitcnt vmcnt(2)')
C('effective context length, blocks per sequence, scale')
A(f'v_add_u32 {V(vT0)}, -1, {V(vCl)}')
A(f'v_mov_b32 {V(vT1)}, 2048')
A(f'v_cmp_gt_u32 vcc, {V(vT1)}, {V(vT0)}')
A(f'v_cmp_ge_i32 s[{s_t0}:{s_t0+1}], 0, {V(vCl)}') if s_t0 % 2 == 0 else None
assert (s_t1 % 2) == 0
A(f'v_cmp_ge_i32 s[{s_t1}:{s_t1+1}], 0, {V(vCl)}')
A(f'v_mov_b32 {V(vT2)}, {f32(SCALE)}')
A(f'v_cndmask_b32 {V(vCl)}, {V(vT1)}, {V(vCl)}, vcc')
A(f'v_cndmask_b32 {V(vSc)}, {V(vT2)}, 0, s[{s_t1}:{s_t1+1}]')
A(f'v_cmp_gt_u32 vcc, 32, {V(vLane)}')
A(f'v_add_u32 {V(vNb)}, 15, {V(vCl)}')
A(f'v_lshrrev_b32 {V(vNb)}, 4, {V(vNb)}')
A(f'v_cndmask_b32 {V(vNb)}, 0, {V(vNb)}, vcc')
A(f'v_mov_b32 {V(vPend)}, {V(vNb)}')
for sh in (1, 2, 4, 8):
    A('s_nop 1')
    A(f'v_add_u32_dpp {V(vPend)}, {V(vPend)}, {V(vPend)} row_shr:{sh} row_mask:0xf bank_mask:0xf bound_ctrl:0')
A('s_nop 1')
A(f'v_add_u32_dpp {V(vPend)}, {V(vPend)}, {V(vPend)} row_bcast:15 row_mask:0xa bank_mask:0xf')
A('s_nop 0')
A(f'v_readlane_b32 {S(s_T)}, {V(vPend)}, 31')
A(f'v_sub_u32 {V(vP)}, {V(vPend)}, {V(vNb)}')
A(f's_mul_i32 {S(s_f)}, s2, {S(s_T)}')
A(f's_add_u32 {S(s_e)}, {S(s_f)}, {S(s_T)}')
A(f's_lshr_b32 {S(s_f)}, {S(s_f)}, 8')
A(f's_lshr_b32 {S(s_e)}, {S(s_e)}, 8')
A(f's_add_u32 {S(s_t0)}, s2, 1')
A(f's_cmp_lt_u32 {S(s_T)}, {NWG}')
A(f's_cselect_b32 {S(s_f)}, s2, {S(s_f)}')
A(f's_cselect_b32 {S(s_e)}, {S(s_t0)}, {S(s_e)}')
A(f's_cmp_ge_u32 {S(s_f)}, {S(s_T)}')
A('s_cbranch_scc1 L_exit_wait')
A(f'v_cmp_ge_u32 vcc, {S(s_f)}, {V(vPend)}')
A(f's_bcnt1_i32_b32 {S(s_b)}, vcc_lo')
A(f'v_readlane_b32 {S(s_t0)}, {V(vP)}, {S(s_b)}')
A(f'v_readlane_b32 {S(s_nb)}, {V(vNb)}, {S(s_b)}')
A(f'v_readlane_b32 {S(s_cl)}, {V(vCl)}, {S(s_b)}')
A(f'v_readlane_b32 {S(s_c)}, {V(vSc)}, {S(s_b)}')
A(f's_sub_u32 {S(s_blk)}, {S(s_f)}, {S(s_t0)}')
A(f's_lshl_b32 {S(s_t0)}, {S(s_b)}, 7')
A(f's_add_u32 {S(s_t0)}, {S(s_t0)}, {S(s_blk)}')
A(f's_lshl_b32 {S(s_t0)}, {S(s_t0)}, 2')
A(f'v_mov_b32 {V(vT0)}, {S(s_t0)}')
C('Q source offset of the first sequence')
A(f's_lshl_b32 {S(s_t1)}, {S(s_b)}, 13')
A(f's_lshl_b32 {S(s_t2)}, {S(s_h)}, 10')
A(f's_add_u32 {S(s_t1)}, {S(s_t1)}, {S(s_t2)}')
A(f's_mov_b32 m0, {S(s_ldsQ)}')
A('s_waitcnt vmcnt(0)')
A('s_barrier')
A(f'ds_read_b32 {V(vBTv)}, {V(vT0)}')
A(f'buffer_load_dwordx4 {V(vQoff)}, {srd(sQ)}, {S(s_t1)} offen lds')
A('s_waitcnt lgkmcnt(0)')
A(f'v_readfirstlane_b32 {S(s_nxt)}, {V(vBTv)}')
A(f's_lshl_b32 {S(s_nxt)}, {S(s_nxt)}, 16')
A(f's_add_u32 {S(s_nxt)}, {S(s_nxt)}, {S(s_hoff)}')

def k_dma(j):
    r = []
    if j == 0:
        r.append(f's_mov_b32 m0, {S(s_ldsK)}')
        r.append(f's_mov_b32 {S(s_t3)}, {S(s_nxt)}')
    else:
        r.append(f's_add_u32 m0, m0, 1056')
        r.append(f's_add_u32 {S(s_t3)}, {S(s_t3)}, 8192')
    r.append(f'buffer_load_dwordx4 {V(vKoff)}, {srd(sK)}, {S(s_t3)} offen {NT} lds')
    return r
def v_load(j):
    r = []
    if j == 0:
        r.append(f'buffer_load_dwordx4 {VR(vV, 4)}, {V(vVoff)}, {srd(sV)}, {S(s_nxt)} offen {NT}')
    else:
        r.append(f's_add_u32 {S(s_t3)}, {S(s_nxt)}, {4096*j}')
        r.append(f'buffer_load_dwordx4 {VR(vV+4*j, 4)}, {V(vVoff)}, {srd(sV)}, {S(s_t3)} offen {NT}')
    return r
for j in range(8):
    for x in k_dma(j): A(x)
for j in range(8):
    for x in v_load(j): A(x)

C('off-critical-path: first WG and WG count of every sequence')
A(f'v_cvt_f32_u32 {V(vT0)}, {S(s_T)}')
A(f'v_rcp_f32 {V(vT0)}, {V(vT0)}')
A(f'v_lshlrev_b32 {V(vT1)}, 8, {V(vP)}')
A(f'v_add_u32 {V(vT1)}, 255, {V(vT1)}')
A(f'v_lshlrev_b32 {V(vT2)}, 8, {V(vPend)}')
A(f'v_add_u32 {V(vT2)}, -1, {V(vT2)}')
def divT(x, q):
    A(f'v_cvt_f32_u32 {V(q)}, {V(x)}')
    A(f'v_mul_f32 {V(q)}, {V(q)}, {V(vT0)}')
    A(f'v_cvt_u32_f32 {V(q)}, {V(q)}')
    A(f'v_mul_lo_u32 {V(vT3)}, {V(q)}, {S(s_T)}')
    A(f'v_sub_u32 {V(vT3)}, {V(x)}, {V(vT3)}')
    A(f'v_cmp_gt_i32 vcc, 0, {V(vT3)}')
    A(f'v_add_u32 {V(vT4)}, {S(s_T)}, {V(vT3)}')
    A('s_nop 0')
    A(f'v_cndmask_b32 {V(vT3)}, {V(vT3)}, {V(vT4)}, vcc')
    A(f'v_subbrev_co_u32 {V(q)}, vcc, 0, {V(q)}, vcc')
    A(f'v_cmp_le_u32 vcc, {S(s_T)}, {V(vT3)}')
    A('s_nop 1')
    A(f'v_addc_co_u32 {V(q)}, vcc, 0, {V(q)}, vcc')
divT(vT1, vWf)
divT(vT2, vCnt)
A(f'v_add_u32 {V(vT2)}, -1, {V(vPend)}')
A(f's_cmp_lt_u32 {S(s_T)}, {NWG}')
A(f's_cselect_b64 vcc, -1, 0')
A(f'v_cndmask_b32 {V(vWf)}, {V(vWf)}, {V(vP)}, vcc')
A(f'v_cndmask_b32 {V(vCnt)}, {V(vCnt)}, {V(vT2)}, vcc')
A(f'v_sub_u32 {V(vCnt)}, {V(vCnt)}, {V(vWf)}')
A(f'v_add_u32 {V(vCnt)}, 1, {V(vCnt)}')
for r in range(32):
    A(f'v_mov_b32 {V(vAcc+r)}, 0')
A(f'v_mov_b32 {V(vM)}, {f32(-1e30)}')
A(f'v_mov_b32 {V(vL)}, 0')
A(f'v_mov_b32 {V(vRet)}, 0')
A(f'v_mov_b32 {V(vSegB)}, 0')

def q_frags_and_prefetch():
    for j in range(8):
        A(f'ds_read_b128 {VR(vQ+4*j, 4)}, {V(vQrd)} offset:{64*j}')
    A(f's_add_u32 {S(s_t1)}, {S(s_b)}, 1')
    A(f's_lshl_b32 {S(s_t1)}, {S(s_t1)}, 13')
    A(f's_lshl_b32 {S(s_t2)}, {S(s_h)}, 10')
    A(f's_add_u32 {S(s_t1)}, {S(s_t1)}, {S(s_t2)}')
    A(f's_mov_b32 m0, {S(s_ldsQ)}')
    A('s_waitcnt lgkmcnt(0)')
    A(f'buffer_load_dwordx4 {V(vQoff)}, {srd(sQ)}, {S(s_t1)} offen lds')
A('s_waitcnt vmcnt(16)')
q_frags_and_prefetch()

LB('L_loop')
A(f's_add_u32 {S(s_nblk)}, {S(s_blk)}, 1')
A(f's_add_u32 {S(s_nbb)}, {S(s_b)}, 1')
A(f's_cmp_lt_u32 {S(s_nblk)}, {S(s_nb)}')
A(f's_cselect_b32 {S(s_nbb)}, {S(s_b)}, {S(s_nbb)}')
A(f's_cselect_b32 {S(s_nblk)}, {S(s_nblk)}, 0')
A(f's_lshl_b32 {S(s_t0)}, {S(s_nbb)}, 7')
A(f's_add_u32 {S(s_t0)}, {S(s_t0)}, {S(s_nblk)}')
A(f's_lshl_b32 {S(s_t0)}, {S(s_t0)}, 2')
A(f'v_mov_b32 {V(vT0)}, {S(s_t0)}')
A(f's_add_u32 {S(s_f)}, {S(s_f)}, 1')
A(f'ds_read_b32 {V(vBTv)}, {V(vT0)}')
A('s_waitcnt vmcnt(8)')
for j in range(8):
    A(f'ds_read_b128 {VR(vKf+4*j, 4)}, {V(vKrd)} offset:{64*j}')
A('s_waitcnt lgkmcnt(0)')
A(f'v_readfirstlane_b32 {S(s_nxt)}, {V(vBTv)}')
A(f'v_mfma_f32_16x16x32_bf16 {VR(vS,4)}, {VR(vKf,4)}, {VR(vQ,4)}, 0')
A(f's_lshl_b32 {S(s_nxt)}, {S(s_nxt)}, 16')
A(f's_add_u32 {S(s_nxt)}, {S(s_nxt)}, {S(s_hoff)}')
A(f's_cmp_lt_u32 {S(s_f)}, {S(s_e)}')
A(f's_cselect_b32 {S(s_nxt)}, {S(s_nxt)}, {OOB_KV}')
for j in range(1, 8):
    A(f'v_mfma_f32_16x16x32_bf16 {VR(vS,4)}, {VR(vKf+4*j,4)}, {VR(vQ+4*j,4)}, {VR(vS,4)}')
    if j <= 4:
        for x in k_dma(j-1): A(x)
for j in range(4, 8):
    for x in k_dma(j): A(x)
C('mask the tail of the last block')
A(f's_cmp_lg_u32 {S(s_nblk)}, 0')
A('s_cbranch_scc1 L_nomask')
A(f's_lshl_b32 {S(s_t0)}, {S(s_blk)}, 4')
A(f's_sub_u32 {S(s_t0)}, {S(s_cl)}, {S(s_t0)}')
for i in range(4):
    A(f'v_cmp_gt_i32 vcc, {S(s_t0)}, {V(vTok)}')
    A(f's_sub_u32 {S(s_t0)}, {S(s_t0)}, 1')
    A('s_nop 0')
    A(f'v_cndmask_b32 {V(vS+i)}, {V(vNegInf)}, {V(vS+i)}, vcc')
LB('L_nomask')
A(f'v_max3_f32 {V(vT0)}, {V(vS)}, {V(vS+1)}, {V(vS+2)}')
A(f'v_max_f32 {V(vT0)}, {V(vT0)}, {V(vS+3)}')
A(f'v_mov_b32 {V(vT1)}, {V(vT0)}')
A('s_nop 1')
A(f'v_permlane16_swap_b32 {V(vT0)}, {V(vT1)}')
A(f'v_max3_f32 {V(vMn)}, {V(vT0)}, {V(vT1)}, {V(vM)}')
A(f'v_cmp_gt_f32 vcc, {V(vMn)}, {V(vM)}')
A('s_cbranch_vccz L_norescale')
A(f'v_sub_f32 {V(vT2)}, {V(vM)}, {V(vMn)}')
A(f'v_mul_f32 {V(vT2)}, {S(s_c)}, {V(vT2)}')
A(f'v_exp_f32 {V(vT2)}, {V(vT2)}')
A(f'v_mov_b32 {V(vM)}, {V(vMn)}')
A('s_nop 0')
A(f'v_mul_f32 {V(vL)}, {V(vL)}, {V(vT2)}')
for e in range(8):
    A(f'v_mul_f32_dpp {V(vAcc+4*e)}, {V(vT2)}, {V(vAcc+4*e)} quad_perm:[0,0,2,2] row_mask:0xf bank_mask:0xf')
    A(f'v_mul_f32_dpp {V(vAcc+4*e+1)}, {V(vT2)}, {V(vAcc+4*e+1)} quad_perm:[1,1,3,3] row_mask:0xf bank_mask:0xf')
LB('L_norescale')
A(f'v_mul_f32 {V(vT0)}, {S(s_c)}, {V(vM)}')
for i in range(4):
    A(f'v_fma_f32 {V(vS+i)}, {V(vS+i)}, {S(s_c)}, -{V(vT0)}')
for i in range(4):
    A(f'v_exp_f32 {V(vS+i)}, {V(vS+i)}')
A('s_nop 0')
A(f'v_add_f32 {V(vT0)}, {V(vS)}, {V(vS+1)}')
A(f'v_add_f32 {V(vT1)}, {V(vS+2)}, {V(vS+3)}')
A(f'v_cvt_pk_bf16_f32 {V(vPk)}, {V(vS)}, {V(vS+1)}')
A(f'v_cvt_pk_bf16_f32 {V(vPk+1)}, {V(vS+2)}, {V(vS+3)}')
A(f'v_add_f32 {V(vT0)}, {V(vT0)}, {V(vT1)}')
A(f'v_add_f32 {V(vL)}, {V(vL)}, {V(vT0)}')
A('s_waitcnt vmcnt(8)')
A(f's_cmp_eq_u32 {S(s_pend)}, 0')
A('s_cbranch_scc1 L_nopend')
def signal(sb):
    A(f's_lshl_b32 {S(s_t0)}, {S(sb)}, 3')
    A(f's_lshr_b32 {S(s_t1)}, {S(s_h)}, 2')
    A(f's_lshl_b32 {S(s_t1)}, {S(s_t1)}, 2')
    A(f's_add_u32 {S(s_t0)}, {S(s_t0)}, {S(s_t1)}')
    A(f'v_mov_b32 {V(vT2)}, {S(s_t0)}')
    A(f's_lshl_b64 exec, 1, {S(s_seg)}')
    A(f'v_mov_b32 {V(vSegB)}, {S(sb)}')
    A(f'v_mov_b32 {V(vRet)}, {S(s_inc)}')
    A(f'buffer_atomic_add {V(vRet)}, {V(vT2)}, {srd(sDBG)}, 0 offen sc0')
    A('s_mov_b64 exec, -1')
    A(f's_add_u32 {S(s_seg)}, {S(s_seg)}, 1')
signal(s_pendb)
A(f's_mov_b32 {S(s_pend)}, 0')
LB('L_nopend')
def perms(g):
    r = []
    for rr in range(4):
        for s in range(2):
            e = 2*rr + s
            sel = S(s_sel1 if s else s_sel0)
            d = vKf + 16*g + 2*e
            r.append(f'v_perm_b32 {V(d)}, {V(vV+4*(4*g+1)+rr)}, {V(vV+4*(4*g)+rr)}, {sel}')
            r.append(f'v_perm_b32 {V(d+1)}, {V(vV+4*(4*g+3)+rr)}, {V(vV+4*(4*g+2)+rr)}, {sel}')
    return r
def pv(g, e):
    return f'v_mfma_f32_4x4x4_16b_bf16 {VR(vAcc+4*e,4)}, {VR(vPk,2)}, {VR(vKf+16*g+2*e,2)}, {VR(vAcc+4*e,4)} cbsz:3 abid:{4*g}'
for x in perms(0): A(x)
for j in range(4):
    for x in v_load(j): A(x)
p1 = perms(1)
for e in range(8):
    A(pv(0, e))
    A(p1[2*e]); A(p1[2*e+1])
for j in range(4, 8):
    for x in v_load(j): A(x)
for e in range(8):
    A(pv(1, e))
C('segment end?')
A(f's_cmp_ge_u32 {S(s_f)}, {S(s_e)}')
A('s_cbranch_scc1 L_fin')
A(f's_cmp_lg_u32 {S(s_nblk)}, 0')
A(f's_mov_b32 {S(s_blk)}, {S(s_nblk)}')
A('s_cbranch_scc1 L_loop')
LB('L_fin')
C('merge the two half-waves, publish the partial')
A(f'v_mov_b32 {V(vT0)}, {V(vL)}')
A(f'v_mov_b32 {V(vT1)}, {V(vM)}')
A(f'v_mov_b32 {V(vT2)}, {V(vM)}')
A('s_nop 0')
A(f'v_permlane16_swap_b32 {V(vL)}, {V(vT0)}')
A(f'v_permlane32_swap_b32 {V(vT1)}, {V(vT2)}')
A(f'v_add_f32 {V(vL)}, {V(vL)}, {V(vT0)}')
A(f'v_max_f32 {V(vMn)}, {V(vT1)}, {V(vT2)}')
A(f'v_sub_f32 {V(vT2)}, {V(vM)}, {V(vMn)}')
A(f'v_mul_f32 {V(vT2)}, {S(s_c)}, {V(vT2)}')
A(f'v_exp_f32 {V(vT2)}, {V(vT2)}')
A(f'v_mul_f32 {V(vT4)}, {S(s_c)}, {V(vMn)}')
A(f's_add_u32 {S(s_t0)}, s2, {S(s_b)}')
A(f'v_mul_f32 {V(vL)}, {V(vL)}, {V(vT2)}')
for e in range(8):
    A(f'v_mul_f32_dpp {V(vAcc+4*e)}, {V(vT2)}, {V(vAcc+4*e)} quad_perm:[0,0,2,2] row_mask:0xf bank_mask:0xf')
    A(f'v_mul_f32_dpp {V(vAcc+4*e+1)}, {V(vT2)}, {V(vAcc+4*e+1)} quad_perm:[1,1,3,3] row_mask:0xf bank_mask:0xf')
A(f'v_mov_b32 {V(vT0)}, {V(vL)}')
A(f's_lshl_b32 {S(s_t1)}, {S(s_t0)}, 14')
A(f's_lshl_b32 {S(s_t2)}, {S(s_h)}, 11')
A(f's_add_u32 {S(s_t1)}, {S(s_t1)}, {S(s_t2)}')
A(f'v_permlane32_swap_b32 {V(vL)}, {V(vT0)}')
for e in range(8):
    A(f'v_permlane32_swap_b32 {V(vAcc+4*e)}, {V(vAcc+4*e+1)}')
A(f'v_add_f32 {V(vT5)}, {V(vL)}, {V(vT0)}')
for e in range(8):
    A(f'v_add_f32 {V(vKf+e)}, {V(vAcc+4*e)}, {V(vAcc+4*e+1)}')
A(f's_lshl_b32 {S(s_t0)}, {S(s_t0)}, 3')
A(f's_add_u32 {S(s_t0)}, {S(s_t0)}, {S(s_h)}')
A(f's_lshl_b32 {S(s_t0)}, {S(s_t0)}, 4')
A(f's_add_u32 {S(s_t0)}, {S(s_t0)}, {STATS}')
A(f'v_lshlrev_b32 {V(vT0)}, 3, {V(vLane)}')
A(f'buffer_store_dwordx4 {VR(vKf,4)}, {V(vPoff)}, {srd(sWS)}, {S(s_t1)} offen sc1')
A(f'buffer_store_dwordx4 {VR(vKf+4,4)}, {V(vPoff)}, {srd(sWS)}, {S(s_t1)} offen offset:16 sc1')
A('s_mov_b64 exec, 3')
A(f'buffer_store_dwordx2 {VR(vT4,2)}, {V(vT0)}, {srd(sWS)}, {S(s_t0)} offen sc1')
A('s_mov_b64 exec, -1')
A(f's_cmp_ge_u32 {S(s_f)}, {S(s_e)}')
A('s_cbranch_scc1 L_done')
C('next segment')
A(f's_mov_b32 {S(s_pend)}, 1')
A(f's_mov_b32 {S(s_pendb)}, {S(s_b)}')
A(f's_mov_b32 {S(s_b)}, {S(s_nbb)}')
A(f'v_readlane_b32 {S(s_nb)}, {V(vNb)}, {S(s_b)}')
A(f'v_readlane_b32 {S(s_cl)}, {V(vCl)}, {S(s_b)}')
A(f'v_readlane_b32 {S(s_c)}, {V(vSc)}, {S(s_b)}')
for e in range(8):
    A(f'v_mov_b32 {V(vAcc+4*e)}, 0')
    A(f'v_mov_b32 {V(vAcc+4*e+1)}, 0')
A(f'v_mov_b32 {V(vM)}, {f32(-1e30)}')
A(f'v_mov_b32 {V(vL)}, 0')
q_frags_and_prefetch()
A('s_branch L_loop')

LB('L_done')
A('s_waitcnt vmcnt(0)')
signal(s_b)
A(f'v_and_b32 {V(vT0)}, 15, {V(vLane)}')
A(f'v_lshlrev_b32 {V(vT0)}, 7, {V(vT0)}')
A(f'v_lshrrev_b32 {V(vT1)}, 5, {V(vLane)}')
A(f'v_lshl_add_u32 {V(vStOff)}, {V(vT1)}, 3, {V(vT0)}')
A(f's_mov_b32 {S(s_i)}, 0')
A('s_waitcnt vmcnt(0)')
LB('L_chk')
A(f'v_readlane_b32 {S(s_b)}, {V(vSegB)}, {S(s_i)}')
A(f'v_readlane_b32 {S(s_t0)}, {V(vRet)}, {S(s_i)}')
A('s_nop 3')
A(f'v_readlane_b32 {S(s_n)}, {V(vCnt)}, {S(s_b)}')
A(f'v_readlane_b32 {S(s_slot)}, {V(vWf)}, {S(s_b)}')
A(f's_lshr_b32 {S(s_t0)}, {S(s_t0)}, {S(s_shift)}')
A(f's_and_b32 {S(s_t0)}, {S(s_t0)}, 0xff')
A(f's_add_u32 {S(s_t0)}, {S(s_t0)}, 1')
A(f's_cmp_lg_u32 {S(s_t0)}, {S(s_n)}')
A('s_cbranch_scc1 L_chk_next')
C('last arriver: combine the partials of (b, h)')
A(f's_add_u32 {S(s_slot)}, {S(s_slot)}, {S(s_b)}')
cM, cL, cW, cSt = vM, vL, vT4, 24
cAcc = vAcc + 24
cD = 32
CH = 15
A(f'v_mov_b32 {V(cM)}, {V(vNegInf)}')
A(f'v_mov_b32 {V(cL)}, 0')
for e in range(8):
    A(f'v_mov_b32 {V(cAcc+e)}, 0')
A(f's_mov_b32 {S(s_k0)}, 0')
LB('L_cchunk')
A(f's_lshl_b32 {S(s_t0)}, {S(s_slot)}, 3')
A(f's_add_u32 {S(s_t0)}, {S(s_t0)}, {S(s_h)}')
A(f's_lshl_b32 {S(s_t0)}, {S(s_t0)}, 4')
A(f's_add_u32 {S(s_t0)}, {S(s_t0)}, {STATS}')
A(f's_sub_u32 {S(s_t1)}, {S(s_n)}, {S(s_k0)}')
A(f's_min_u32 {S(s_t1)}, {S(s_t1)}, {CH}')
A(f'v_and_b32 {V(vT0)}, 15, {V(vLane)}')
A(f'v_cmp_gt_u32 vcc, {S(s_t1)}, {V(vT0)}')
A(f'v_mov_b32 {V(vT1)}, {OOB_WS}')
A(f's_lshl_b32 {S(s_t2)}, {S(s_slot)}, 14')
A(f'v_cndmask_b32 {V(vT1)}, {V(vT1)}, {V(vStOff)}, vcc')
A(f's_lshl_b32 {S(s_t3)}, {S(s_h)}, 11')
A(f's_add_u32 {S(s_t2)}, {S(s_t2)}, {S(s_t3)}')
A(f'buffer_load_dwordx2 {VR(cSt,2)}, {V(vT1)}, {srd(sWS)}, {S(s_t0)} offen sc1')
for k in range(CH):
    A(f's_cmp_gt_u32 {S(s_t1)}, {k}')
    A(f's_cselect_b32 {S(s_t3)}, {S(s_t2)}, {OOB_WS}')
    A(f'buffer_load_dwordx4 {VR(cD+8*k,4)}, {V(vPoff)}, {srd(sWS)}, {S(s_t3)} offen sc1')
    A(f'buffer_load_dwordx4 {VR(cD+8*k+4,4)}, {V(vPoff)}, {srd(sWS)}, {S(s_t3)} offen offset:16 sc1')
    A(f's_add_u32 {S(s_t2)}, {S(s_t2)}, 16384')
A(f's_waitcnt vmcnt({2*CH})')
A(f'v_cndmask_b32 {V(cSt)}, {V(vNegInf)}, {V(cSt)}, vcc')
A(f'v_max_f32 {V(vT0)}, {V(cSt)}, {V(cM)}')
for sh in (1, 2, 4, 8):
    A('s_nop 1')
    A(f'v_max_f32_dpp {V(vT0)}, {V(vT0)}, {V(vT0)} row_ror:{sh} row_mask:0xf bank_mask:0xf')
A(f'v_sub_f32 {V(cW)}, {V(cSt)}, {V(vT0)}')
A(f'v_sub_f32 {V(vT1)}, {V(cM)}, {V(vT0)}')
A(f'v_exp_f32 {V(cW)}, {V(cW)}')
A(f'v_exp_f32 {V(vT1)}, {V(vT1)}')
A(f'v_mov_b32 {V(cM)}, {V(vT0)}')
A(f'v_mul_f32 {V(vT2)}, {V(cW)}, {V(cSt+1)}')
for sh in (1, 2, 4, 8):
    A('s_nop 1')
    A(f'v_add_f32_dpp {V(vT2)}, {V(vT2)}, {V(vT2)} row_ror:{sh} row_mask:0xf bank_mask:0xf')
A(f'v_fma_f32 {V(cL)}, {V(cL)}, {V(vT1)}, {V(vT2)}')
for e in range(8):
    A(f'v_mul_f32 {V(cAcc+e)}, {V(cAcc+e)}, {V(vT1)}')
for k in range(CH):
    A(f's_waitcnt vmcnt({2*(CH-1-k)})')
    for e in range(8):
        A(f'v_fmac_f32_dpp {V(cAcc+e)}, {V(cW)}, {V(cD+8*k+e)} row_newbcast:{k} row_mask:0xf bank_mask:0xf')
A(f's_add_u32 {S(s_k0)}, {S(s_k0)}, {CH}')
A(f's_add_u32 {S(s_slot)}, {S(s_slot)}, {CH}')
A(f's_cmp_lt_u32 {S(s_k0)}, {S(s_n)}')
A('s_cbranch_scc1 L_cchunk')
A(f'v_rcp_f32 {V(vT0)}, {V(cL)}')
A(f's_lshl_b32 {S(s_t0)}, {S(s_b)}, 13')
A(f's_lshl_b32 {S(s_t1)}, {S(s_h)}, 10')
A(f's_add_u32 {S(s_t0)}, {S(s_t0)}, {S(s_t1)}')
for e in range(8):
    A(f'v_mul_f32 {V(cAcc+e)}, {V(cAcc+e)}, {V(vT0)}')
for e in range(4):
    A(f'v_cvt_pk_bf16_f32 {V(vS+e)}, {V(cAcc+2*e)}, {V(cAcc+2*e+1)}')
A(f'buffer_store_dwordx4 {VR(vS,4)}, {V(vOutOff)}, {srd(sOUT)}, {S(s_t0)} offen')
A('s_nop 1')
LB('L_chk_next')
A(f's_add_u32 {S(s_i)}, {S(s_i)}, 1')
A(f's_cmp_lt_u32 {S(s_i)}, {S(s_seg)}')
A('s_cbranch_scc1 L_chk')
A('s_endpgm')
LB('L_exit_wait')
A('s_waitcnt vmcnt(0)')
LB('L_end')
A('s_endpgm')
L.append('.section .rodata,"a"')
L.append('.p2align 6')
L.append(f'.amdhsa_kernel {KN}')
L.append(f'  .amdhsa_next_free_vgpr {NVGPR}')
L.append('  .amdhsa_next_free_sgpr 96')
L.append(f'  .amdhsa_accum_offset {(NVGPR+3)//4*4}')
L.append('  .amdhsa_group_segment_fixed_size 0')
L.append('  .amdhsa_kernarg_size 64')
L.append('  .amdhsa_user_sgpr_count 2')
L.append('  .amdhsa_user_sgpr_kernarg_segment_ptr 1')
L.append('  .amdhsa_system_sgpr_workgroup_id_x 1')
L.append('.end_amdhsa_kernel')
open(out, 'w').write('\n'.join(x for x in L if x is not None) + '\n')
print('wrote', out, 'lds', LDS_TOTAL)
```

```python
import sys, struct
out = sys.argv[1] if len(sys.argv) > 1 else 'standalone__paged_block_table_kv_pagedattention__sampling.s'
OPT = dict(nt='nt', stamps='0', chk='16', forceslow='0', nocompute='0')
for a in sys.argv[2:]:
    k, v = a.split('='); OPT[k] = v
NT = OPT['nt'].replace('+', ' ')
if NT == 'none': NT = ''
STAMPS = int(OPT['stamps'])
KN = 'standalone__paged_block_table_kv_pagedattention__sampling_kernel'
L = []
def A(s): L.append('    ' + s)
def LB(s): L.append(s + ':')
def C(s): L.append('    ; ' + s)
def f32(x): return '0x%08x' % struct.unpack('<I', struct.pack('<f', x))[0]

NWG = 256
KV_BYTES = 4100 * 65536
WS_BYTES = 1074790400
LDS_K = 16384
KSLOT = 8448
LDS_Q = LDS_K + 8 * KSLOT
LDS_MB = LDS_Q + 8 * 1024
LDS_TOTAL = LDS_MB + 64
STATS = 0x800000
OWNSLOT = 288
OOB_KV = 0x20000000
OOB_WS = 0x60000000
SCALE = 1.4426950408889634 / 16.0
CHK = int(OPT['chk'])

sK, sV, sQ, sWS, sDBG, sOUT, sBT, sCL = 4, 8, 12, 16, 20, 24, 28, 32
def srd(b): return f's[{b}:{b+3}]'
KA = 36
names = '''h g j x xe own exg clg cur cb cblk cph c nxt nseq nblk nph segcnt pendb pendcnt seg needq pf chk chkpend
n slot0 rank t0 t1 t2 t3 ldsK ldsQ hoffw hoffo sel0 sel1 shift first T k0 i slot qoffw EXT'''.split()
R = {}
idx = 52
for nme in names:
    R[nme] = idx; idx += 1
assert idx <= 100, idx
class _S:
    def __getattr__(self, k): return f's{R[k]}'
s = _S()
assert R['t0'] % 2 == 0 and R['t2'] % 2 == 0, (R['t0'], R['t2'])
T0P = f"s[{R['t0']}:{R['t0']+1}]"; T2P = f"s[{R['t2']}:{R['t2']+1}]"
s_stamp = 36
vLane, vKVoff, vKrd, vQrd, vQoff, vTok, vPoff, vLane4 = 0, 1, 2, 3, 4, 5, 6, 7
vNb, vCl, vSc, vEx, vEXe, vSp, vSPe, vRKs = 8, 9, 10, 11, 12, 13, 14, 15
vSegB, vM, vL, vNegInf, vT0, vT1, vT2, vT3 = 16, 17, 18, 19, 20, 21, 22, 23
vS = 24
vPk = 28
vPick, vMn = 30, 31
vOutOff, vStOff, vT4, vT5 = 32, 33, 34, 35
vRet, vChk, vBT, vMBa = 36, 37, 38, 39
vQ = 40
vKf = 72
vV = 104
vAcc = 136
vY = 168
vYS = 184
vSlOff = 186
vWA, vWB, vXS = 187, 188, 190
NVGPR = 192
CH = 15
cD = 40; cAcc = 160; cSt = 24; cW = vT4
def V(x): return f'v{x}'
def VR(x, n): return f'v[{x}:{x+n-1}]'

def stamp(i):
    if STAMPS:
        A('s_memrealtime s[100:101]')
        A('s_waitcnt lgkmcnt(0)')
        A(f's_mov_b32 s{s_stamp+i}, s100')
def stamp_flush():
    if STAMPS:
        A('s_lshl_b32 s100, s2, 3')
        A(f's_add_u32 s100, s100, {s.h}')
        A('s_lshl_b32 s100, s100, 6')
        A('s_add_u32 s100, s100, 0x2000000')
        for i in range(8):
            A(f'v_mov_b32 v{40+i}, s{s_stamp+i}')
        A('v_mov_b32 v48, 0')
        A('s_mov_b64 exec, 1')
        A(f'buffer_store_dwordx4 v[40:43], v48, {srd(sWS)}, s100 offen')
        A(f'buffer_store_dwordx4 v[44:47], v48, {srd(sWS)}, s100 offen offset:16')
        A('s_mov_b64 exec, -1')

hdr = open('standalone__paged_block_table_kv_pagedattention__sampling.s.ref').read().split('\n')
for line in hdr:
    if line.startswith('; @launch'):
        L.append(f'; @launch grid=({NWG},1,1) block=(512,1,1) lds={LDS_TOTAL}')
        break
    L.append(line)
L.append('.amdgcn_target "amdgcn-amd-amdhsa--gfx950"')
L.append('.text')
L.append(f'.globl {KN}')
L.append('.p2align 8')
L.append(f'.type {KN},@function')
LB(KN)
A(f's_cmp_ge_u32 s2, {NWG}')
A('s_cbranch_scc1 L_end')
if STAMPS:
    A('s_memrealtime s[98:99]')
A(f's_load_dwordx16 s[{KA}:{KA+15}], s[0:1], 0')
A(f'v_lshrrev_b32 {V(vT0)}, 6, v0')
A(f'v_and_b32 {V(vLane)}, 63, v0')
A(f'v_readfirstlane_b32 {s.h}, {V(vT0)}')
C('lane constants')
A(f'v_lshrrev_b32 {V(vT0)}, 5, {V(vLane)}')
A(f'v_and_b32 {V(vT1)}, 31, {V(vLane)}')
A(f'v_lshlrev_b32 {V(vT2)}, 4, {V(vT1)}')
A(f'v_lshl_add_u32 {V(vKVoff)}, {V(vT0)}, 15, {V(vT2)}')
A(f'v_lshl_add_u32 {V(vOutOff)}, {V(vT0)}, 9, {V(vT2)}')
A(f'v_lshlrev_b32 {V(vT2)}, 5, {V(vT1)}')
A(f'v_lshl_add_u32 {V(vPoff)}, {V(vT0)}, 10, {V(vT2)}')
A(f'v_and_b32 {V(vT2)}, 15, {V(vLane)}')
A(f'v_lshlrev_b32 {V(vT2)}, 7, {V(vT2)}')
A(f'v_lshl_add_u32 {V(vStOff)}, {V(vT0)}, 3, {V(vT2)}')
A(f'v_lshlrev_b32 {V(vQoff)}, 4, {V(vLane)}')
A(f'v_lshlrev_b32 {V(vLane4)}, 2, {V(vLane)}')
A(f'v_lshrrev_b32 {V(vT0)}, 4, {V(vLane)}')
A(f'v_lshlrev_b32 {V(vTok)}, 2, {V(vT0)}')
A(f'v_lshlrev_b32 {V(vT2)}, 4, {V(vT0)}')
A(f'v_bfe_u32 {V(vT1)}, {V(vLane)}, 3, 1')
A(f'v_lshl_add_u32 {V(vT3)}, {V(vT1)}, 9, {V(vT2)}')
A(f'v_and_b32 {V(vT1)}, 7, {V(vLane)}')
A(f'v_mul_u32_u24 {V(vT1)}, 1056, {V(vT1)}')
A(f's_mul_i32 {s.ldsK}, {s.h}, {KSLOT}')
A(f's_add_u32 {s.ldsK}, {s.ldsK}, {LDS_K}')
A(f's_lshl_b32 {s.qoffw}, {s.h}, 10')
A(f's_add_u32 {s.ldsQ}, {s.qoffw}, {LDS_Q}')
A(f'v_add3_u32 {V(vKrd)}, {V(vT3)}, {V(vT1)}, {s.ldsK}')
A(f'v_and_b32 {V(vT1)}, 1, {V(vLane)}')
A(f'v_lshl_add_u32 {V(vT2)}, {V(vT1)}, 9, {V(vT2)}')
A(f'v_add_u32 {V(vQrd)}, {s.ldsQ}, {V(vT2)}')
A(f'v_mov_b32 {V(vNegInf)}, 0xff800000')
A(f's_lshl_b32 {s.hoffw}, {s.h}, 9')
A(f's_mov_b32 {s.sel0}, 0x05040100')
A(f's_mov_b32 {s.sel1}, 0x07060302')
A(f's_lshr_b32 {s.g}, s2, 3')
A(f's_and_b32 {s.j}, s2, 7')
A(f's_lshl_b32 {s.hoffo}, {s.j}, 9')
A(f's_and_b32 {s.shift}, {s.h}, 3')
A(f's_lshl_b32 {s.shift}, {s.shift}, 3')
A(f's_mov_b32 {s.seg}, 0')
A(f's_mov_b32 {s.pendcnt}, 0')
A(f's_mov_b32 {s.pf}, 0')
A(f's_mov_b32 {s.chkpend}, 0')
A(f's_mov_b32 {s.first}, 1')
A(f's_mov_b32 {s.segcnt}, 0')
A(f'v_mov_b32 {V(vMBa)}, {LDS_MB}')
A(f'v_and_b32 {V(vT3)}, 124, {V(vLane4)}')
A(f'v_mov_b32 {V(vT0)}, 8')
A(f's_lshl_b32 {s.t0}, {s.h}, 11')
A(f'v_mov_b32 {V(vT1)}, 0')
A(f'ds_write_b64 {V(vMBa)}, {VR(vT0,2)}')
A('s_waitcnt lgkmcnt(0)')
def mksrd(b, ka, nbytes):
    A(f's_mov_b32 s{b}, s{KA+ka}')
    A(f's_and_b32 s{b+1}, s{KA+ka+1}, 0xffff')
    A(f's_mov_b32 s{b+2}, {nbytes}')
    A(f's_mov_b32 s{b+3}, 0x20000')
mksrd(sCL, 8, 128)
mksrd(sBT, 6, 16384)
A(f'buffer_load_dword {V(vCl)}, {V(vT3)}, {srd(sCL)}, 0 offen')
A(f's_mov_b32 m0, {s.t0}')
mksrd(sK, 2, KV_BYTES)
A(f'buffer_load_dwordx4 {V(vQoff)}, {srd(sBT)}, {s.t0} offen lds')
A(f'buffer_load_dwordx4 {V(vQoff)}, {srd(sBT)}, {s.t0} offen offset:1024 lds')
mksrd(sV, 4, KV_BYTES)
mksrd(sQ, 0, 32 * 16 * 512)
mksrd(sWS, 14, WS_BYTES)
mksrd(sDBG, 12, 256)
mksrd(sOUT, 10, 32 * 16 * 512)
if STAMPS:
    A(f's_mov_b32 s{s_stamp}, s98')
stamp(1)
A('s_waitcnt vmcnt(2)')
C('effective context length, blocks per sequence, scale')
A(f'v_add_u32 {V(vT0)}, -1, {V(vCl)}')
A(f'v_mov_b32 {V(vT1)}, 2048')
A(f'v_cmp_gt_u32 vcc, {V(vT1)}, {V(vT0)}')
A(f'v_cmp_ge_i32 {T2P}, 0, {V(vCl)}')
A(f'v_mov_b32 {V(vT2)}, {f32(SCALE)}')
A(f'v_cndmask_b32 {V(vCl)}, {V(vT1)}, {V(vCl)}, vcc')
A(f'v_cndmask_b32 {V(vSc)}, {V(vT2)}, 0, {T2P}')
A(f'v_add_u32 {V(vNb)}, 15, {V(vCl)}')
A(f'v_lshrrev_b32 {V(vNb)}, 4, {V(vNb)}')
def scan(v):
    for sh in (1, 2, 4, 8):
        A('s_nop 1')
        A(f'v_add_u32_dpp {V(v)}, {V(v)}, {V(v)} row_shr:{sh} row_mask:0xf bank_mask:0xf bound_ctrl:0')
    A('s_nop 1')
    A(f'v_add_u32_dpp {V(v)}, {V(v)}, {V(v)} row_bcast:15 row_mask:0xa bank_mask:0xf')
A(f'v_mov_b32 {V(vT0)}, {V(vNb)}')
A(f'v_lshrrev_b32 {V(vT4)}, 5, {V(vLane)}')
scan(vT0)
A(f'v_lshlrev_b32 {V(vT4)}, 2, {V(vT4)}')
A(f'v_readlane_b32 {s.T}, {V(vT0)}, 31')
A(f'v_sub_u32 {V(vT4)}, {V(vT4)}, {V(vNb)}')
A(f's_add_u32 {s.t0}, {s.T}, 31')
A(f's_lshr_b32 {s.t0}, {s.t0}, 5')
C('smallest budget Lm = C + d (d = 0..7) whose whole helper rounds cover the excess')
cand = [vEx, vSp, vEXe, vSPe]
A(f'v_add_u32 {V(vT4)}, {s.t0}, {V(vT4)}')
for r in range(4):
    A(f'v_add_u32 {V(vT1)}, {r}, {V(vT4)}')
    A(f'v_and_b32 {V(vT2)}, -8, {V(vT1)}')
    A(f'v_min_i32 {V(vT1)}, 0, {V(vT1)}')
    A(f'v_max_i32 {V(cand[r])}, {V(vT1)}, {V(vT2)}')
for sh in (1, 2, 4, 8):
    for r in range(4):
        A(f'v_add_u32_dpp {V(cand[r])}, {V(cand[r])}, {V(cand[r])} row_shr:{sh} row_mask:0xf bank_mask:0xf bound_ctrl:0')
for r in range(4):
    A(f'v_add_u32_dpp {V(cand[r])}, {V(cand[r])}, {V(cand[r])} row_bcast:15 row_mask:0xa bank_mask:0xf')
A(f's_mov_b32 {s.t1}, 7')
for d in (6, 5, 4, 3, 2, 1, 0):
    A(f'v_readlane_b32 {s.t2}, {V(cand[d&3])}, {63 if d >= 4 else 31}')
    A(f's_cmp_ge_i32 {s.t2}, 0')
    A(f's_cselect_b32 {s.t1}, {d}, {s.t1}')
A(f's_add_u32 {s.t0}, {s.t0}, {s.t1}')
A(f'v_min_u32 {V(vT1)}, {s.t0}, {V(vNb)}')
A(f'v_sub_u32 {V(vEx)}, {V(vNb)}, {V(vT1)}')
A(f'v_sub_u32 {V(vSp)}, {s.t0}, {V(vT1)}')
A(f'v_and_b32 {V(vSp)}, -8, {V(vSp)}')
A(f'v_min_u32 {V(vT2)}, 8, {V(vSp)}')
A(f'v_lshl_or_b32 {V(vT0)}, {V(vSp)}, 12, {V(vEx)}')
A(f'v_lshl_or_b32 {V(vT0)}, {V(vT2)}, 24, {V(vT0)}')
scan(vT0)
A(f'v_readlane_b32 {s.own}, {V(vT1)}, {s.g}')
A(f'v_readlane_b32 {s.t1}, {V(vSp)}, {s.g}')
A(f'v_and_b32 {V(vEXe)}, 0xfff, {V(vT0)}')
A(f'v_bfe_u32 {V(vSPe)}, {V(vT0)}, 12, 12')
A(f'v_lshrrev_b32 {V(vRKs)}, 24, {V(vT0)}')
A(f'v_readlane_b32 {s.EXT}, {V(vEXe)}, 31')
A(f'v_readlane_b32 {s.t2}, {V(vSPe)}, {s.g}')
A(f'v_readlane_b32 {s.exg}, {V(vEx)}, {s.g}')
A(f'v_readlane_b32 {s.clg}, {V(vCl)}, {s.g}')
A(f'v_sub_u32 {V(vRKs)}, {V(vRKs)}, {V(vT2)}')
A(f'v_and_b32 {V(vRKs)}, 0xff, {V(vRKs)}')
A(f's_sub_u32 {s.t2}, {s.t2}, {s.t1}')
A(f's_mul_i32 {s.t3}, {s.t1}, {s.j}')
A(f's_add_u32 {s.xe}, {s.t3}, {s.t1}')
A(f's_lshr_b32 {s.t3}, {s.t3}, 3')
A(f's_lshr_b32 {s.xe}, {s.xe}, 3')
A(f's_cmp_ge_u32 {s.t1}, 8')
A(f's_cselect_b32 {s.rank}, {s.j}, {s.t3}')
A(f's_add_u32 {s.x}, {s.t3}, {s.t2}')
A(f's_add_u32 {s.xe}, {s.xe}, {s.t2}')
A(f's_min_u32 {s.x}, {s.x}, {s.EXT}')
A(f's_min_u32 {s.xe}, {s.xe}, {s.EXT}')

lab = [0]
def decode_next(pro):
    lab[0] += 1; n = lab[0]
    A(f's_cmp_ge_u32 {s.x}, {s.xe}')
    A(f's_cbranch_scc1 L_dn_own{n}')
    A(f'v_cmp_ge_u32 vcc, {s.x}, {V(vEXe)}')
    A(f's_bcnt1_i32_b32 {s.nseq}, vcc_lo')
    A(f'v_readlane_b32 {s.t0}, {V(vEXe)}, {s.nseq}')
    A(f'v_readlane_b32 {s.t1}, {V(vEx)}, {s.nseq}')
    A(f's_sub_u32 {s.t0}, {s.t0}, {s.t1}')
    A(f's_sub_u32 {s.nblk}, {s.x}, {s.t0}')
    A(f's_add_u32 {s.x}, {s.x}, 1')
    A(f's_mov_b32 {s.nph}, 1')
    A(f's_branch L_dn_bt{n}')
    LB(f'L_dn_own{n}')
    A(f's_mov_b32 {s.t0}, {s.h}')
    if not pro:
        A(f's_cmp_lg_u32 {s.first}, 0')
        A(f's_cbranch_scc1 L_dn_idx{n}')
        A('s_waitcnt lgkmcnt(0)')
        A(f'v_readfirstlane_b32 {s.t1}, {V(vPick)}')
        A(f's_and_b32 {s.t0}, {s.t1}, 0xffff')
        A(f's_lshr_b32 {s.t1}, {s.t1}, 16')
        A(f's_or_b32 {s.pf}, {s.pf}, {s.t1}')
        A(f's_cmp_eq_u32 {s.t0}, {s.chk}')
        A(f's_cselect_b32 {s.chkpend}, 2, {s.chkpend}')
        LB(f'L_dn_idx{n}')
    A(f's_mov_b32 {s.first}, 0')
    A(f's_mov_b32 {s.nseq}, {s.g}')
    A(f's_add_u32 {s.nblk}, {s.exg}, {s.t0}')
    A(f's_cmp_lt_u32 {s.t0}, {s.own}')
    A(f's_cselect_b32 {s.nph}, 0, 2')
    A(f's_cselect_b32 {s.nblk}, {s.nblk}, 0')
    LB(f'L_dn_bt{n}')
    A(f's_lshl_b32 {s.t0}, {s.nseq}, 7')
    A(f's_add_u32 {s.t0}, {s.t0}, {s.nblk}')
    A(f's_lshl_b32 {s.t0}, {s.t0}, 2')
    A(f'v_mov_b32 {V(vT0)}, {s.t0}')
def decode_fin():
    A(f'v_readfirstlane_b32 {s.nxt}, {V(vBT)}')
    A(f's_cmp_eq_u32 {s.nph}, 1')
    A(f's_cselect_b32 {s.t0}, {s.hoffw}, {s.hoffo}')
    A(f's_lshl_b32 {s.nxt}, {s.nxt}, 16')
    A(f's_add_u32 {s.nxt}, {s.nxt}, {s.t0}')
    A(f's_cmp_eq_u32 {s.nph}, 2')
    A(f's_cselect_b32 {s.nxt}, {OOB_KV}, {s.nxt}')
def q_dma():
    A(f's_cmp_eq_u32 {s.nph}, 1')
    A(f's_cselect_b32 {s.t1}, {s.hoffw}, {s.hoffo}')
    A(f's_lshl_b32 {s.t1}, {s.t1}, 1')
    A(f's_lshl_b32 {s.t2}, {s.nseq}, 13')
    A(f's_mov_b32 m0, {s.ldsQ}')
    A(f's_add_u32 {s.t1}, {s.t1}, {s.t2}')
    A(f'buffer_load_dwordx4 {V(vQoff)}, {srd(sQ)}, {s.t1} offen lds')
def k_dma(j):
    r = []
    if j == 0:
        r.append(f's_mov_b32 m0, {s.ldsK}')
        r.append(f's_mov_b32 {s.t3}, {s.nxt}')
    else:
        r.append('s_add_u32 m0, m0, 1056')
        r.append(f's_add_u32 {s.t3}, {s.t3}, 4096')
    r.append(f'buffer_load_dwordx4 {V(vKVoff)}, {srd(sK)}, {s.t3} offen {NT} lds')
    return r
def v_load(j):
    r = []
    if j == 0:
        r.append(f'buffer_load_dwordx4 {VR(vV, 4)}, {V(vKVoff)}, {srd(sV)}, {s.cur} offen {NT}')
    else:
        r.append(f's_add_u32 {s.t3}, {s.cur}, {4096*j}')
        r.append(f'buffer_load_dwordx4 {VR(vV+4*j, 4)}, {V(vKVoff)}, {srd(sV)}, {s.t3} offen {NT}')
    return r

decode_next(True)
A('s_waitcnt vmcnt(0)')
A('s_barrier')
stamp(2)
A(f'ds_read_b32 {V(vBT)}, {V(vT0)}')
q_dma()
A('s_waitcnt lgkmcnt(0)')
decode_fin()
for j in range(8):
    for x in k_dma(j): A(x)

C('off the critical path: own slot rank, helper count and first slot of the own sequence')
A(f'v_readlane_b32 {s.t0}, {V(vRKs)}, {s.g}')
A(f's_add_u32 {s.rank}, {s.rank}, {s.t0}')
def rank_of(xs, dst):
    A(f'v_cmp_ge_u32 vcc, {xs}, {V(vSPe)}')
    A(f's_bcnt1_i32_b32 {s.t1}, vcc_lo')
    A(f's_min_u32 {s.t1}, {s.t1}, 31')
    A(f'v_readlane_b32 {s.t2}, {V(vSPe)}, {s.t1}')
    A(f'v_readlane_b32 {s.t3}, {V(vSp)}, {s.t1}')
    A(f'v_readlane_b32 {dst}, {V(vRKs)}, {s.t1}')
    A(f's_sub_u32 {s.t2}, {s.t2}, {s.t3}')
    A(f's_sub_u32 {s.t2}, {xs}, {s.t2}')
    A(f'v_mul_u32_u24 {V(vT0)}, {s.t3}, {V(vLane)}')
    A(f'v_lshrrev_b32 {V(vT0)}, 3, {V(vT0)}')
    A(f'v_cmp_ge_u32 vcc, {s.t2}, {V(vT0)}')
    A(f's_and_b32 {s.t1}, vcc_lo, 0xfe')
    A(f's_bcnt1_i32_b32 {s.t1}, {s.t1}')
    A(f's_cmp_ge_u32 {s.t3}, 8')
    A(f's_cselect_b32 {s.t1}, {s.t1}, {s.t2}')
    A(f's_add_u32 {dst}, {dst}, {s.t1}')
def helper_span(sb):
    A(f'v_readlane_b32 {s.t0}, {V(vEXe)}, {sb}')
    A(f'v_readlane_b32 {s.k0}, {V(vEx)}, {sb}')
    A(f's_sub_u32 {s.k0}, {s.t0}, {s.k0}')
    A(f's_sub_u32 {s.t0}, {s.t0}, 1')
    rank_of(s.t0, s.n)
    rank_of(s.k0, s.slot0)
    A(f's_sub_u32 {s.n}, {s.n}, {s.slot0}')
    A(f's_add_u32 {s.n}, {s.n}, 1')
    A(f's_add_u32 {s.slot0}, {s.slot0}, {sb}')
helper_span(s.g)
A(f's_cmp_eq_u32 {s.exg}, 0')
A(f's_cselect_b32 {s.n}, 0, {s.n}')
A(f's_cselect_b32 {s.pf}, 3, 0')
A(f's_sub_u32 {s.chk}, {s.own}, {CHK}')
A(f's_max_i32 {s.chk}, {s.chk}, 8')
A(f's_cmp_eq_u32 {s.exg}, 0')
A(f's_cselect_b32 {s.chk}, 0xffff, {s.chk}')
C('slice of a partial record this wave combines: head h>>2, d = (h&3)*64 + lane')
A(f's_lshl_b32 {s.t0}, {s.h}, 8')
A(f'v_add_u32 {V(vSlOff)}, {s.t0}, {V(vLane4)}')
for r in range(32):
    A(f'v_mov_b32 {V(vAcc+r)}, 0')
A(f'v_mov_b32 {V(vM)}, {f32(-1e30)}')
A(f'v_mov_b32 {V(vL)}, 0')
A(f'v_mov_b32 {V(vRet)}, 0')
A(f'v_mov_b32 {V(vSegB)}, 0')
A(f's_mov_b32 {s.c}, 0')
stamp(3)
A(f's_cmp_eq_u32 {s.nph}, 2')
A('s_cbranch_scc1 L_own_done')
A('s_branch L_newseg')

def merge_halves():
    A(f'v_mov_b32 {V(vT0)}, {V(vL)}')
    A(f'v_mov_b32 {V(vT1)}, {V(vM)}')
    A(f'v_mov_b32 {V(vT2)}, {V(vM)}')
    A('s_nop 0')
    A(f'v_permlane16_swap_b32 {V(vL)}, {V(vT0)}')
    A(f'v_permlane32_swap_b32 {V(vT1)}, {V(vT2)}')
    A(f'v_add_f32 {V(vL)}, {V(vL)}, {V(vT0)}')
    A(f'v_max_f32 {V(vMn)}, {V(vT1)}, {V(vT2)}')
    A(f'v_sub_f32 {V(vT2)}, {V(vM)}, {V(vMn)}')
    A(f'v_mul_f32 {V(vT2)}, {s.c}, {V(vT2)}')
    A(f'v_exp_f32 {V(vT2)}, {V(vT2)}')
    A(f'v_mul_f32 {V(vT4)}, {s.c}, {V(vMn)}')
    A('s_nop 0')
    A(f'v_mul_f32 {V(vL)}, {V(vL)}, {V(vT2)}')
    for e in range(8):
        A(f'v_mul_f32_dpp {V(vAcc+4*e)}, {V(vT2)}, {V(vAcc+4*e)} quad_perm:[0,0,2,2] row_mask:0xf bank_mask:0xf')
        A(f'v_mul_f32_dpp {V(vAcc+4*e+1)}, {V(vT2)}, {V(vAcc+4*e+1)} quad_perm:[1,1,3,3] row_mask:0xf bank_mask:0xf')
    A(f'v_mov_b32 {V(vT0)}, {V(vL)}')
    A('s_nop 1')
    A(f'v_permlane32_swap_b32 {V(vL)}, {V(vT0)}')
    for e in range(8):
        A(f'v_permlane32_swap_b32 {V(vAcc+4*e)}, {V(vAcc+4*e+1)}')
    A(f'v_add_f32 {V(vT5)}, {V(vL)}, {V(vT0)}')
    for e in range(8):
        A(f'v_add_f32 {V(vKf+e)}, {V(vAcc+4*e)}, {V(vAcc+4*e+1)}')
    A(f'v_lshlrev_b32 {V(vT0)}, 3, {V(vLane)}')

def signal(sb, scnt, head_is_wave=True):
    hh = s.h if head_is_wave else s.j
    A(f's_lshl_b32 {s.t0}, {sb}, 3')
    A(f's_and_b32 {s.t1}, {hh}, 4')
    A(f's_add_u32 {s.t0}, {s.t0}, {s.t1}')
    A(f's_and_b32 {s.t1}, {hh}, 3')
    A(f's_lshl_b32 {s.t1}, {s.t1}, 3')
    A(f's_lshl_b32 {s.t1}, {scnt}, {s.t1}')
    A(f's_lshl_b32 {s.t2}, {scnt}, 8')
    A(f's_or_b32 {s.t2}, {s.t2}, {sb}')
    A(f'v_mov_b32 {V(vT2)}, {s.t0}')
    A(f's_lshl_b64 exec, 1, {s.seg}')
    A(f'v_mov_b32 {V(vSegB)}, {s.t2}')
    A(f'v_mov_b32 {V(vRet)}, {s.t1}')
    A(f'buffer_atomic_add {V(vRet)}, {V(vT2)}, {srd(sDBG)}, 0 offen sc0')
    A('s_mov_b64 exec, -1')
    A(f's_add_u32 {s.seg}, {s.seg}, 1')

def chk_issue():
    A(f's_lshl_b32 {s.t0}, {s.g}, 3')
    A(f's_and_b32 {s.t1}, {s.j}, 4')
    A(f's_add_u32 {s.t0}, {s.t0}, {s.t1}')
    A(f'v_mov_b32 {V(vT2)}, {s.t0}')
    A(f'buffer_load_dword {V(vChk)}, {V(vT2)}, {srd(sDBG)}, 0 offen sc1')
def chk_eval(tag):
    A(f'v_readfirstlane_b32 {s.t0}, {V(vChk)}')
    A(f's_and_b32 {s.t1}, {s.j}, 3')
    A(f's_lshl_b32 {s.t1}, {s.t1}, 3')
    A(f's_lshr_b32 {s.t0}, {s.t0}, {s.t1}')
    A(f's_and_b32 {s.t0}, {s.t0}, 0xff')
    if OPT['forceslow'] == '1':
        A(f's_add_u32 {s.t0}, {s.t0}, 1000')
    A(f's_cmp_lg_u32 {s.t0}, {s.exg}')
    A(f's_cbranch_scc1 L_chkno{tag}')
    A(f'v_mov_b32 {V(vT2)}, 0x10000')
    A(f'ds_or_b32 {V(vMBa)}, {V(vT2)}' + (' offset:4' if tag == 'c' else ''))
    LB(f'L_chkno{tag}')
def pf_issue():
    A(f's_lshl_b32 {s.t0}, {s.slot}, 3')
    A(f's_add_u32 {s.t0}, {s.t0}, {s.j}')
    A(f's_lshl_b32 {s.t0}, {s.t0}, 4')
    A(f's_add_u32 {s.t0}, {s.t0}, {STATS}')
    A(f's_and_b32 {s.t2}, {s.h}, 4')
    A(f's_lshl_b32 {s.t2}, {s.t2}, 1')
    A(f's_add_u32 {s.t0}, {s.t0}, {s.t2}')
    A(f'v_and_b32 {V(vT0)}, 15, {V(vLane)}')
    A(f'v_cmp_gt_u32 vcc, {s.t1}, {V(vT0)}')
    A(f'v_lshlrev_b32 {V(vT0)}, 7, {V(vT0)}')
    A(f'v_mov_b32 {V(vT1)}, {OOB_WS}')
    A(f's_lshl_b32 {s.t2}, {s.slot}, 14')
    A(f'v_cndmask_b32 {V(vT1)}, {V(vT1)}, {V(vT0)}, vcc')
    A(f's_lshl_b32 {s.t3}, {s.j}, 11')
    A(f's_add_u32 {s.t2}, {s.t2}, {s.t3}')
    A(f'buffer_load_dwordx2 {VR(vYS,2)}, {V(vT1)}, {srd(sWS)}, {s.t0} offen sc1')
    for k in range(16):
        A(f's_cmp_gt_u32 {s.t1}, {k}')
        A(f's_cselect_b32 {s.t3}, {s.t2}, {OOB_WS}')
        A(f'buffer_load_dword {V(vY+k)}, {V(vSlOff)}, {srd(sWS)}, {s.t3} offen sc1')
        A(f's_add_u32 {s.t2}, {s.t2}, 16384')

LB('L_switch')
merge_halves()
A(f's_add_u32 {s.t0}, {s.rank}, {s.cb}')
A(f's_lshl_b32 {s.t1}, {s.t0}, 14')
A(f's_lshl_b32 {s.t2}, {s.h}, 11')
A(f's_add_u32 {s.t1}, {s.t1}, {s.t2}')
A(f's_lshl_b32 {s.t0}, {s.t0}, 3')
A(f's_add_u32 {s.t0}, {s.t0}, {s.h}')
A(f's_lshl_b32 {s.t0}, {s.t0}, 4')
A(f's_add_u32 {s.t0}, {s.t0}, {STATS}')
A(f'buffer_store_dwordx4 {VR(vKf,4)}, {V(vPoff)}, {srd(sWS)}, {s.t1} offen sc1')
A(f'buffer_store_dwordx4 {VR(vKf+4,4)}, {V(vPoff)}, {srd(sWS)}, {s.t1} offen offset:16 sc1')
A('s_mov_b64 exec, 3')
A(f'buffer_store_dwordx2 {VR(vT4,2)}, {V(vT0)}, {srd(sWS)}, {s.t0} offen sc1')
A('s_mov_b64 exec, -1')
A(f's_mov_b32 {s.pendb}, {s.cb}')
A(f's_mov_b32 {s.pendcnt}, {s.segcnt}')
A(f's_mov_b32 {s.segcnt}, 0')
for e in range(8):
    A(f'v_mov_b32 {V(vAcc+4*e)}, 0')
    A(f'v_mov_b32 {V(vAcc+4*e+1)}, 0')
A(f'v_mov_b32 {V(vM)}, {f32(-1e30)}')
A(f'v_mov_b32 {V(vL)}, 0')
A(f's_cmp_eq_u32 {s.nph}, 2')
A('s_cbranch_scc1 L_own_done')
LB('L_newseg')
A(f'v_readlane_b32 {s.c}, {V(vSc)}, {s.nseq}')
A(f's_mov_b32 {s.needq}, 1')

LB('L_loop')
A(f's_mov_b32 {s.cur}, {s.nxt}')
A(f's_mov_b32 {s.cb}, {s.nseq}')
A(f's_mov_b32 {s.cblk}, {s.nblk}')
A(f's_mov_b32 {s.cph}, {s.nph}')
A(f's_add_u32 {s.segcnt}, {s.segcnt}, 1')
A('s_waitcnt vmcnt(0)')
A(f's_cmp_eq_u32 {s.cph}, 0')
A('s_cbranch_scc1 L_nobar')
A('s_barrier')
LB('L_nobar')
for j in range(8):
    for x in v_load(j): A(x)
C('take the next own block')
A(f's_cmp_lt_u32 {s.x}, {s.xe}')
A('s_cbranch_scc1 L_nopick')
A(f's_cmp_lg_u32 {s.first}, 0')
A('s_cbranch_scc1 L_nopick')
A(f'v_mov_b32 {V(vT0)}, 1')
A('s_mov_b64 exec, 1')
A(f'ds_add_rtn_u32 {V(vPick)}, {V(vMBa)}, {V(vT0)}')
A('s_mov_b64 exec, -1')
LB('L_nopick')
A(f's_cmp_eq_u32 {s.pendcnt}, 0')
A('s_cbranch_scc1 L_nopend')
signal(s.pendb, s.pendcnt)
A(f's_mov_b32 {s.pendcnt}, 0')
LB('L_nopend')
A(f's_cmp_lg_u32 {s.chkpend}, 1')
A('s_cbranch_scc1 L_nochk')
chk_eval('a')
A(f's_mov_b32 {s.chkpend}, 0')
LB('L_nochk')
A(f's_cmp_eq_u32 {s.needq}, 0')
A('s_cbranch_scc1 L_noq')
for j in range(8):
    A(f'ds_read_b128 {VR(vQ+4*j, 4)}, {V(vQrd)} offset:{64*j}')
A(f's_mov_b32 {s.needq}, 0')
LB('L_noq')
for j in range(8):
    A(f'ds_read_b128 {VR(vKf+4*j, 4)}, {V(vKrd)} offset:{64*j}')
for j in range(8):
    A(f's_waitcnt lgkmcnt({7-j})')
    A(f'v_mfma_f32_16x16x32_bf16 {VR(vS,4)}, {VR(vKf+4*j,4)}, {VR(vQ+4*j,4)}, {VR(vS,4) if j else 0}')
decode_next(False)
A(f'ds_read_b32 {V(vBT)}, {V(vT0)}')
C('mask the tail of the last block of the own sequence')
A(f's_lshl_b32 {s.t0}, {s.cblk}, 4')
A(f's_sub_u32 {s.t0}, {s.clg}, {s.t0}')
A(f's_cmp_lg_u32 {s.cph}, 0')
A('s_cbranch_scc1 L_nomask')
A(f's_cmp_ge_u32 {s.t0}, 16')
A('s_cbranch_scc1 L_nomask')
for i in range(4):
    A(f'v_cmp_gt_i32 vcc, {s.t0}, {V(vTok)}')
    A(f's_sub_u32 {s.t0}, {s.t0}, 1')
    A('s_nop 0')
    A(f'v_cndmask_b32 {V(vS+i)}, {V(vNegInf)}, {V(vS+i)}, vcc')
LB('L_nomask')
A(f'v_max3_f32 {V(vT0)}, {V(vS)}, {V(vS+1)}, {V(vS+2)}')
A(f'v_max_f32 {V(vT0)}, {V(vT0)}, {V(vS+3)}')
A(f'v_mov_b32 {V(vT1)}, {V(vT0)}')
A('s_nop 1')
A(f'v_permlane16_swap_b32 {V(vT0)}, {V(vT1)}')
A(f'v_max3_f32 {V(vMn)}, {V(vT0)}, {V(vT1)}, {V(vM)}')
A(f'v_cmp_gt_f32 vcc, {V(vMn)}, {V(vM)}')
A('s_cbranch_vccz L_norescale')
A(f'v_sub_f32 {V(vT2)}, {V(vM)}, {V(vMn)}')
A(f'v_mul_f32 {V(vT2)}, {s.c}, {V(vT2)}')
A(f'v_exp_f32 {V(vT2)}, {V(vT2)}')
A(f'v_mov_b32 {V(vM)}, {V(vMn)}')
A('s_nop 0')
A(f'v_mul_f32 {V(vL)}, {V(vL)}, {V(vT2)}')
for e in range(8):
    A(f'v_mul_f32_dpp {V(vAcc+4*e)}, {V(vT2)}, {V(vAcc+4*e)} quad_perm:[0,0,2,2] row_mask:0xf bank_mask:0xf')
    A(f'v_mul_f32_dpp {V(vAcc+4*e+1)}, {V(vT2)}, {V(vAcc+4*e+1)} quad_perm:[1,1,3,3] row_mask:0xf bank_mask:0xf')
LB('L_norescale')
A(f'v_mul_f32 {V(vT0)}, {s.c}, {V(vM)}')
for i in range(4):
    A(f'v_fma_f32 {V(vS+i)}, {V(vS+i)}, {s.c}, -{V(vT0)}')
for i in range(4):
    A(f'v_exp_f32 {V(vS+i)}, {V(vS+i)}')
A('s_waitcnt lgkmcnt(0)')
decode_fin()
A(f'v_add_f32 {V(vT0)}, {V(vS)}, {V(vS+1)}')
A(f'v_add_f32 {V(vT1)}, {V(vS+2)}, {V(vS+3)}')
A(f'v_cvt_pk_bf16_f32 {V(vPk)}, {V(vS)}, {V(vS+1)}')
A(f'v_cvt_pk_bf16_f32 {V(vPk+1)}, {V(vS+2)}, {V(vS+3)}')
A(f'v_add_f32 {V(vT0)}, {V(vT0)}, {V(vT1)}')
A(f'v_add_f32 {V(vL)}, {V(vL)}, {V(vT0)}')
A('s_waitcnt vmcnt(0)')
for j in range(8):
    for x in k_dma(j): A(x)
C('segment change ahead: s.i = 1; fetch its Q')
A(f's_cmp_lg_u32 {s.nseq}, {s.cb}')
A(f's_cselect_b32 {s.i}, 1, 0')
A(f's_cmp_lg_u32 {s.nph}, {s.cph}')
A(f's_cselect_b32 {s.i}, 1, {s.i}')
A(f's_cmp_eq_u32 {s.i}, 0')
A('s_cbranch_scc1 L_sameseg')
q_dma()
LB('L_sameseg')
A(f's_cmp_lg_u32 {s.chkpend}, 2')
A('s_cbranch_scc1 L_nochk2')
chk_issue()
A(f's_mov_b32 {s.chkpend}, 1')
LB('L_nochk2')
A(f's_cmp_lg_u32 {s.pf}, 1')
A('s_cbranch_scc1 L_nopf')
A(f's_mov_b32 {s.slot}, {s.slot0}')
A(f's_mov_b32 {s.t1}, {s.n}')
pf_issue()
A(f's_mov_b32 {s.pf}, 3')
LB('L_nopf')
def perms(g):
    r = []
    for rr in range(4):
        for q in range(2):
            e = 2*rr + q
            sel = s.sel1 if q else s.sel0
            d = vKf + 16*g + 2*e
            r.append(f'v_perm_b32 {V(d)}, {V(vV+4*(4*g+1)+rr)}, {V(vV+4*(4*g)+rr)}, {sel}')
            r.append(f'v_perm_b32 {V(d+1)}, {V(vV+4*(4*g+3)+rr)}, {V(vV+4*(4*g+2)+rr)}, {sel}')
    return r
def pv(g, e):
    return f'v_mfma_f32_4x4x4_16b_bf16 {VR(vAcc+4*e,4)}, {VR(vPk,2)}, {VR(vKf+16*g+2*e,2)}, {VR(vAcc+4*e,4)} cbsz:3 abid:{4*g}'
for x in perms(0): A(x)
p1 = perms(1)
for e in range(8):
    A(pv(0, e))
    A(p1[2*e]); A(p1[2*e+1])
A('s_nop 0')
for e in range(8):
    A(pv(1, e))
A(f's_cmp_eq_u32 {s.i}, 0')
A('s_cbranch_scc1 L_loop')
A(f's_cmp_lg_u32 {s.cph}, 0')
A('s_cbranch_scc1 L_switch')

LB('L_own_done')
A(f'v_readlane_b32 {s.c}, {V(vSc)}, {s.g}')
stamp(4)
merge_halves()
A(f'v_add_u32 {V(vT1)}, {s.ldsK}, {V(vPoff)}')
A(f'v_add_u32 {V(vT0)}, {s.ldsK}, {V(vT0)}')
A('s_waitcnt vmcnt(0)')
A(f'ds_write_b128 {V(vT1)}, {VR(vKf,4)}')
A(f'ds_write_b128 {V(vT1)}, {VR(vKf+4,4)} offset:16')
A('s_mov_b64 exec, 3')
A(f'ds_write_b64 {V(vT0)}, {VR(vT4,2)} offset:2048')
A('s_mov_b64 exec, -1')
A(f's_cmp_eq_u32 {s.pendcnt}, 0')
A('s_cbranch_scc1 L_nopend2')
signal(s.pendb, s.pendcnt)
A(f's_mov_b32 {s.pendcnt}, 0')
LB('L_nopend2')
A(f's_cmp_lg_u32 {s.chkpend}, 1')
A('s_cbranch_scc1 L_nochk3')
chk_eval('b')
LB('L_nochk3')
C('LDS addresses of the final merge')
A(f'v_and_b32 {V(vT0)}, 7, {V(vLane)}')
A(f'v_mul_u32_u24 {V(vT0)}, {KSLOT}, {V(vT0)}')
A(f's_and_b32 {s.t0}, {s.h}, 4')
A(f's_lshl_b32 {s.t0}, {s.t0}, 1')
A(f's_add_u32 {s.t0}, {s.t0}, {LDS_K + 2048}')
A(f'v_add_u32 {V(vT0)}, {s.t0}, {V(vT0)}')
A(f'v_add_u32 {V(vT1)}, {LDS_K}, {V(vSlOff)}')
A('s_waitcnt lgkmcnt(0)')
A('s_barrier')
stamp(5)
A(f'ds_read_b32 {V(vPick)}, {V(vMBa)}')
A(f'ds_read_b64 {VR(vXS,2)}, {V(vT0)}')
for k in range(8):
    A(f'ds_read_b32 {V(vKf+k)}, {V(vT1)} offset:{k*KSLOT}')
A(f's_cmp_eq_u32 {s.exg}, 0')
A('s_cbranch_scc1 L_fast')
A('s_waitcnt lgkmcnt(9)')
A(f'v_readfirstlane_b32 {s.t0}, {V(vPick)}')
A(f's_lshr_b32 {s.t0}, {s.t0}, 16')
A(f's_cmp_lg_u32 {s.t0}, 0')
A('s_cbranch_scc1 L_fast')
C('not seen complete yet: look once more')
A(f's_cmp_lg_u32 {s.h}, 0')
A('s_cbranch_scc1 L_rechk')
chk_issue()
A('s_waitcnt vmcnt(0)')
chk_eval('c')
A('s_waitcnt lgkmcnt(0)')
LB('L_rechk')
A('s_barrier')
A(f'ds_read_b32 {V(vPick)}, {V(vMBa)} offset:4')
A('s_waitcnt lgkmcnt(0)')
A(f'v_readfirstlane_b32 {s.t0}, {V(vPick)}')
A(f's_lshr_b32 {s.t0}, {s.t0}, 16')
A(f's_cmp_lg_u32 {s.t0}, 0')
A('s_cbranch_scc1 L_fast')
A(f's_mov_b32 {s.n}, 0')
A(f's_mov_b32 {s.pf}, 4')
LB('L_fast')
A(f's_mov_b32 {s.slot}, {s.slot0}')
A(f's_mov_b32 {s.k0}, 0')
A(f's_and_b32 {s.t0}, {s.pf}, 6')
A(f's_cmp_lg_u32 {s.t0}, 0')
A('s_cbranch_scc1 L_havepf')
A(f's_mov_b32 {s.t1}, {s.n}')
pf_issue()
LB('L_havepf')
C('first pass: 8 LDS partials and up to 16 helper partials')
A(f'v_and_b32 {V(vT0)}, 15, {V(vLane)}')
A(f'v_cmp_gt_u32 vcc, {s.n}, {V(vT0)}')
A(f'v_cmp_gt_u32 {T2P}, 8, {V(vT0)}')
A('s_waitcnt vmcnt(0) lgkmcnt(0)')
A(f'v_cndmask_b32 {V(vYS)}, {V(vNegInf)}, {V(vYS)}, vcc')
A(f'v_cndmask_b32 {V(vYS+1)}, 0, {V(vYS+1)}, vcc')
A(f'v_cndmask_b32 {V(vXS)}, {V(vNegInf)}, {V(vXS)}, {T2P}')
A(f'v_max_f32 {V(vM)}, {V(vYS)}, {V(vXS)}')
for sh in (1, 2, 4, 8):
    A('s_nop 1')
    A(f'v_max_f32_dpp {V(vM)}, {V(vM)}, {V(vM)} row_ror:{sh} row_mask:0xf bank_mask:0xf')
A(f'v_sub_f32 {V(vWA)}, {V(vXS)}, {V(vM)}')
A(f'v_sub_f32 {V(vWB)}, {V(vYS)}, {V(vM)}')
A(f'v_exp_f32 {V(vWA)}, {V(vWA)}')
A(f'v_exp_f32 {V(vWB)}, {V(vWB)}')
A(f'v_mov_b32 {V(vT3)}, 0')
A(f'v_mul_f32 {V(vL)}, {V(vWA)}, {V(vXS+1)}')
A(f'v_fmac_f32 {V(vL)}, {V(vWB)}, {V(vYS+1)}')
for k in range(8):
    A(f'v_fmac_f32_dpp {V(vT3)}, {V(vWA)}, {V(vKf+k)} row_newbcast:{k} row_mask:0xf bank_mask:0xf')
for sh in (1, 2, 4, 8):
    A(f'v_add_f32_dpp {V(vL)}, {V(vL)}, {V(vL)} row_ror:{sh} row_mask:0xf bank_mask:0xf')
    A('s_nop 1')
A(f's_cmp_eq_u32 {s.n}, 0')
A('s_cbranch_scc1 L_merged')
for k in range(16):
    A(f'v_fmac_f32_dpp {V(vT3)}, {V(vWB)}, {V(vY+k)} row_newbcast:{k} row_mask:0xf bank_mask:0xf')
LB('L_more')
A(f's_add_u32 {s.k0}, {s.k0}, 16')
A(f's_cmp_ge_u32 {s.k0}, {s.n}')
A('s_cbranch_scc1 L_merged')
C('more than 16 helper partials: further passes')
A(f's_add_u32 {s.slot}, {s.slot}, 16')
A(f's_sub_u32 {s.t1}, {s.n}, {s.k0}')
pf_issue()
A('s_waitcnt vmcnt(0)')
A(f'v_cndmask_b32 {V(vYS)}, {V(vNegInf)}, {V(vYS)}, vcc')
A(f'v_max_f32 {V(vT0)}, {V(vYS)}, {V(vM)}')
for sh in (1, 2, 4, 8):
    A('s_nop 1')
    A(f'v_max_f32_dpp {V(vT0)}, {V(vT0)}, {V(vT0)} row_ror:{sh} row_mask:0xf bank_mask:0xf')
A(f'v_sub_f32 {V(vWB)}, {V(vYS)}, {V(vT0)}')
A(f'v_sub_f32 {V(vT1)}, {V(vM)}, {V(vT0)}')
A(f'v_exp_f32 {V(vWB)}, {V(vWB)}')
A(f'v_exp_f32 {V(vT1)}, {V(vT1)}')
A(f'v_mov_b32 {V(vM)}, {V(vT0)}')
A(f'v_mul_f32 {V(vT2)}, {V(vWB)}, {V(vYS+1)}')
for sh in (1, 2, 4, 8):
    A('s_nop 1')
    A(f'v_add_f32_dpp {V(vT2)}, {V(vT2)}, {V(vT2)} row_ror:{sh} row_mask:0xf bank_mask:0xf')
A(f'v_fma_f32 {V(vL)}, {V(vL)}, {V(vT1)}, {V(vT2)}')
A(f'v_mul_f32 {V(vT3)}, {V(vT3)}, {V(vT1)}')
for k in range(16):
    A(f'v_fmac_f32_dpp {V(vT3)}, {V(vWB)}, {V(vY+k)} row_newbcast:{k} row_mask:0xf bank_mask:0xf')
A('s_branch L_more')
LB('L_merged')
A(f's_cmp_eq_u32 {s.pf}, 4')
A('s_cbranch_scc1 L_slow')
A(f'v_rcp_f32 {V(vT0)}, {V(vL)}')
A(f's_lshl_b32 {s.t0}, s2, 10')
A(f'v_lshrrev_b32 {V(vT1)}, 1, {V(vSlOff)}')
A(f'v_mul_f32 {V(vT3)}, {V(vT3)}, {V(vT0)}')
A(f'v_cvt_pk_bf16_f32 {V(vT3)}, {V(vT3)}, {V(vT3)}')
A(f'buffer_store_short {V(vT3)}, {V(vT1)}, {srd(sOUT)}, {s.t0} offen')
A('s_branch L_tail')
LB('L_slow')
C('helpers still at work: publish the merged own partial and arrive like a helper')
A(f's_add_u32 {s.t0}, {s.g}, {OWNSLOT}')
A(f's_lshl_b32 {s.t1}, {s.t0}, 14')
A(f's_lshl_b32 {s.t2}, {s.j}, 11')
A(f's_add_u32 {s.t1}, {s.t1}, {s.t2}')
A(f's_lshl_b32 {s.t0}, {s.t0}, 3')
A(f's_add_u32 {s.t0}, {s.t0}, {s.j}')
A(f's_lshl_b32 {s.t0}, {s.t0}, 4')
A(f's_add_u32 {s.t0}, {s.t0}, {STATS}')
A(f's_and_b32 {s.t2}, {s.h}, 4')
A(f's_lshl_b32 {s.t2}, {s.t2}, 1')
A(f's_add_u32 {s.t0}, {s.t0}, {s.t2}')
A(f'v_mov_b32 {V(vT4)}, {V(vM)}')
A(f'v_mov_b32 {V(vT5)}, {V(vL)}')
A(f'v_mov_b32 {V(vT0)}, 0')
A(f'buffer_store_dword {V(vT3)}, {V(vSlOff)}, {srd(sWS)}, {s.t1} offen sc1')
A('s_mov_b64 exec, 1')
A(f'buffer_store_dwordx2 {VR(vT4,2)}, {V(vT0)}, {srd(sWS)}, {s.t0} offen sc1')
A('s_mov_b64 exec, -1')
A('s_waitcnt vmcnt(0)')
A('s_barrier')
A(f's_cmp_lg_u32 {s.h}, 0')
A('s_cbranch_scc1 L_tail')
A(f's_mov_b32 {s.i}, 128')
signal(s.g, s.i, head_is_wave=False)
C('mark this arrival as the owner\'s: bit 16')
A(f's_sub_u32 {s.t0}, {s.seg}, 1')
A(f's_lshl_b64 exec, 1, {s.t0}')
A(f'v_or_b32 {V(vSegB)}, 0x10000, {V(vSegB)}')
A('s_mov_b64 exec, -1')

LB('L_tail')
stamp(6)
A(f's_mov_b32 {s.i}, 0')
A('s_waitcnt vmcnt(0)')
LB('L_chk')
A(f's_cmp_ge_u32 {s.i}, {s.seg}')
A('s_cbranch_scc1 L_fin')
A(f'v_readlane_b32 {s.t3}, {V(vSegB)}, {s.i}')
A(f'v_readlane_b32 {s.t0}, {V(vRet)}, {s.i}')
A(f's_add_u32 {s.i}, {s.i}, 1')
A(f's_and_b32 {s.cb}, {s.t3}, 31')
A(f's_bitcmp1_b32 {s.t3}, 16')
A(f's_cselect_b32 {s.cph}, {s.j}, {s.h}')
A(f'v_readlane_b32 {s.t2}, {V(vEx)}, {s.cb}')
A(f's_and_b32 {s.t1}, {s.cph}, 3')
A(f's_lshl_b32 {s.t1}, {s.t1}, 3')
A(f's_lshr_b32 {s.t0}, {s.t0}, {s.t1}')
A(f's_and_b32 {s.t0}, {s.t0}, 0xff')
A(f's_bfe_u32 {s.t3}, {s.t3}, 0x80008')
A(f's_add_u32 {s.t0}, {s.t0}, {s.t3}')
A(f's_add_u32 {s.t2}, {s.t2}, 128')
A(f's_cmp_lg_u32 {s.t0}, {s.t2}')
A('s_cbranch_scc1 L_chk')
helper_span(s.cb)
cM, cL = vM, vL
A(f'v_mov_b32 {V(cM)}, {V(vNegInf)}')
A(f'v_mov_b32 {V(cL)}, 0')
for e in range(8):
    A(f'v_mov_b32 {V(cAcc+e)}, 0')
A(f's_add_u32 {s.slot}, {s.cb}, {OWNSLOT}')
A(f's_mov_b32 {s.nblk}, 1')
A(f's_mov_b32 {s.k0}, 0')
LB('L_cchunk')
A(f's_lshl_b32 {s.t0}, {s.slot}, 3')
A(f's_add_u32 {s.t0}, {s.t0}, {s.cph}')
A(f's_lshl_b32 {s.t0}, {s.t0}, 4')
A(f's_add_u32 {s.t0}, {s.t0}, {STATS}')
A(f'v_and_b32 {V(vT0)}, 15, {V(vLane)}')
A(f'v_cmp_gt_u32 vcc, {s.nblk}, {V(vT0)}')
A(f'v_mov_b32 {V(vT1)}, {OOB_WS}')
A(f's_lshl_b32 {s.t2}, {s.slot}, 14')
A(f'v_cndmask_b32 {V(vT1)}, {V(vT1)}, {V(vStOff)}, vcc')
A(f's_lshl_b32 {s.t3}, {s.cph}, 11')
A(f's_add_u32 {s.t2}, {s.t2}, {s.t3}')
A(f'buffer_load_dwordx2 {VR(cSt,2)}, {V(vT1)}, {srd(sWS)}, {s.t0} offen sc1')
for k in range(CH):
    A(f's_cmp_gt_u32 {s.nblk}, {k}')
    A(f's_cselect_b32 {s.t3}, {s.t2}, {OOB_WS}')
    A(f'buffer_load_dwordx4 {VR(cD+8*k,4)}, {V(vPoff)}, {srd(sWS)}, {s.t3} offen sc1')
    A(f'buffer_load_dwordx4 {VR(cD+8*k+4,4)}, {V(vPoff)}, {srd(sWS)}, {s.t3} offen offset:16 sc1')
    A(f's_add_u32 {s.t2}, {s.t2}, 16384')
A(f's_waitcnt vmcnt({2*CH})')
A(f'v_cndmask_b32 {V(cSt)}, {V(vNegInf)}, {V(cSt)}, vcc')
A(f'v_max_f32 {V(vT0)}, {V(cSt)}, {V(cM)}')
for sh in (1, 2, 4, 8):
    A('s_nop 1')
    A(f'v_max_f32_dpp {V(vT0)}, {V(vT0)}, {V(vT0)} row_ror:{sh} row_mask:0xf bank_mask:0xf')
A(f'v_sub_f32 {V(cW)}, {V(cSt)}, {V(vT0)}')
A(f'v_sub_f32 {V(vT1)}, {V(cM)}, {V(vT0)}')
A(f'v_exp_f32 {V(cW)}, {V(cW)}')
A(f'v_exp_f32 {V(vT1)}, {V(vT1)}')
A(f'v_mov_b32 {V(cM)}, {V(vT0)}')
A(f'v_mul_f32 {V(vT2)}, {V(cW)}, {V(cSt+1)}')
for sh in (1, 2, 4, 8):
    A('s_nop 1')
    A(f'v_add_f32_dpp {V(vT2)}, {V(vT2)}, {V(vT2)} row_ror:{sh} row_mask:0xf bank_mask:0xf')
A(f'v_fma_f32 {V(cL)}, {V(cL)}, {V(vT1)}, {V(vT2)}')
for e in range(8):
    A(f'v_mul_f32 {V(cAcc+e)}, {V(cAcc+e)}, {V(vT1)}')
for k in range(CH):
    A(f's_waitcnt vmcnt({2*(CH-1-k)})')
    for e in range(8):
        A(f'v_fmac_f32_dpp {V(cAcc+e)}, {V(cW)}, {V(cD+8*k+e)} row_newbcast:{k} row_mask:0xf bank_mask:0xf')
A(f's_add_u32 {s.slot}, {s.slot0}, {s.k0}')
A(f's_sub_u32 {s.nblk}, {s.n}, {s.k0}')
A(f's_min_u32 {s.nblk}, {s.nblk}, {CH}')
A(f's_cmp_lt_u32 {s.k0}, {s.n}')
A(f's_add_u32 {s.k0}, {s.k0}, {CH}')
A(f's_sub_u32 {s.t0}, {s.k0}, {CH}')
A(f's_cmp_lt_u32 {s.t0}, {s.n}')
A('s_cbranch_scc1 L_cchunk')
A(f'v_rcp_f32 {V(vT0)}, {V(cL)}')
A(f's_lshl_b32 {s.t0}, {s.cb}, 13')
A(f's_lshl_b32 {s.t1}, {s.cph}, 10')
A(f's_add_u32 {s.t0}, {s.t0}, {s.t1}')
for e in range(8):
    A(f'v_mul_f32 {V(cAcc+e)}, {V(cAcc+e)}, {V(vT0)}')
for e in range(4):
    A(f'v_cvt_pk_bf16_f32 {V(vS+e)}, {V(cAcc+2*e)}, {V(cAcc+2*e+1)}')
A(f'buffer_store_dwordx4 {VR(vS,4)}, {V(vOutOff)}, {srd(sOUT)}, {s.t0} offen')
A('s_branch L_chk')
LB('L_fin')
if STAMPS:
    A('s_waitcnt vmcnt(0)')
    stamp(7)
    stamp_flush()
LB('L_end')
A('s_endpgm')
L.append('.section .rodata,"a"')
L.append('.p2align 6')
L.append(f'.amdhsa_kernel {KN}')
L.append(f'  .amdhsa_next_free_vgpr {NVGPR}')
L.append('  .amdhsa_next_free_sgpr 102')
L.append(f'  .amdhsa_accum_offset {(NVGPR+3)//4*4}')
L.append('  .amdhsa_group_segment_fixed_size 0')
L.append('  .amdhsa_kernarg_size 64')
L.append('  .amdhsa_user_sgpr_count 2')
L.append('  .amdhsa_user_sgpr_kernarg_segment_ptr 1')
L.append('  .amdhsa_system_sgpr_workgroup_id_x 1')
L.append('.end_amdhsa_kernel')
NC=int(OPT['nocompute'])
if NC:
    a=L.index('L_loop:'); b=L.index('L_own_done:')
    keep=[]
    for x in L[a:b]:
        t=x.strip()
        drop=False
        if NC&1 and (t.startswith('v_mfma')): drop=True
        if NC&2 and (t.startswith('v_perm')): drop=True
        if NC&4 and (t.startswith('ds_read_b128')): drop=True
        if NC&8 and (t.startswith('v_exp') or t.startswith('v_mul_f32') or t.startswith('v_fma') or t.startswith('v_max') or t.startswith('v_add_f32') or t.startswith('v_cvt') or t.startswith('v_permlane') or t.startswith('v_sub_f32')): drop=True
        if not drop: keep.append(x)
    L[a:b]=keep
open(out, 'w').write('\n'.join(x for x in L if x is not None) + '\n')
print('wrote', out, 'lds', LDS_TOTAL, 'sgpr top', idx)
```

```python
import sys, struct
out = sys.argv[1] if len(sys.argv) > 1 else 'standalone__paged_block_table_kv_pagedattention__sampling.s'
OPT = dict(nt='nt', stamps='0', chk='16', forceslow='0', nocompute='0', dbgst='0')
for a in sys.argv[2:]:
    k, v = a.split('='); OPT[k] = v
NT = OPT['nt'].replace('+', ' ')
if NT == 'none': NT = ''
STAMPS = int(OPT['stamps'])
KN = 'standalone__paged_block_table_kv_pagedattention__sampling_kernel'
L = []
def A(s): L.append('    ' + s)
def LB(s): L.append(s + ':')
def C(s): L.append('    ; ' + s)
def f32(x): return '0x%08x' % struct.unpack('<I', struct.pack('<f', x))[0]

NWG = 256
KV_BYTES = 4100 * 65536
WS_BYTES = 1074790400
LDS_K = 16384
KSLOT = 8448
LDS_Q = LDS_K + 8 * KSLOT
LDS_MB = LDS_Q + 8 * 1024
LDS_TOTAL = LDS_MB + 64
STATS = 0x800000
OWNSLOT = 288
OOB_KV = 0x20000000
OOB_WS = 0x60000000
SCALE = 1.4426950408889634 / 16.0
CHK = int(OPT['chk'])

sK, sV, sQ, sWS, sDBG, sOUT, sBT, sCL = 4, 8, 12, 16, 20, 24, 28, 32
def srd(b): return f's[{b}:{b+3}]'
KA = 36
names = '''h g j x xe own exg clg cur cb cblk cph c nxt nseq nblk nph segcnt pendb pendcnt seg needq pf chk chkpend
n slot0 rank t0 t1 t2 t3 ldsK ldsQ hoffw hoffo sel0 sel1 shift first T k0 i slot qoffw EXT'''.split()
R = {}
idx = 52
for nme in names:
    R[nme] = idx; idx += 1
assert idx <= 100, idx
class _S:
    def __getattr__(self, k): return f's{R[k]}'
s = _S()
assert R['t0'] % 2 == 0 and R['t2'] % 2 == 0, (R['t0'], R['t2'])
T0P = f"s[{R['t0']}:{R['t0']+1}]"; T2P = f"s[{R['t2']}:{R['t2']+1}]"
s_stamp = 36
vLane, vKVoff, vKrd, vQrd, vQoff, vTok, vPoff, vLane4 = 0, 1, 2, 3, 4, 5, 6, 7
vNb, vCl, vSc, vEx, vEXe, vSp, vSPe, vRKs = 8, 9, 10, 11, 12, 13, 14, 15
vSegB, vM, vL, vNegInf, vT0, vT1, vT2, vT3 = 16, 17, 18, 19, 20, 21, 22, 23
vS = 24
vPk = 28
vPick, vMn = 30, 31
vOutOff, vStOff, vT4, vT5 = 32, 33, 34, 35
vRet, vChk, vBT, vMBa = 36, 37, 38, 39
vQ = 40
vKf = 72
vV = 104
vAcc = 136
vY = 168
vYS = 184
vSlOff = 186
vWA, vWB, vXS = 187, 188, 190
NVGPR = 192
CH = 15
cD = 40; cAcc = 160; cSt = 24; cW = vT4
def V(x): return f'v{x}'
def VR(x, n): return f'v[{x}:{x+n-1}]'

def stamp(i):
    if STAMPS:
        A('s_memrealtime s[100:101]')
        A('s_waitcnt lgkmcnt(0)')
        A(f's_mov_b32 s{s_stamp+i}, s100')
def stamp_flush():
    if STAMPS and OPT['dbgst']=='1':
        A(f's_not_b32 s{s_stamp}, s{s_stamp}')
        A(f's_cmp_lg_u32 {s.h}, 7')
        A('s_cbranch_scc1 L_end')
        for (i,w) in ((0,2),(2,6),(4,10),(7,13)):
            A(f'v_mov_b32 v40, s{s_stamp+i}')
            A(f'v_mov_b32 v41, {4*w}')
            A('s_mov_b64 exec, 1')
            A(f'buffer_atomic_umax v40, v41, {srd(sDBG)}, 0 offen')
            A('s_mov_b64 exec, -1')
    elif STAMPS:
        A('s_lshl_b32 s100, s2, 3')
        A(f's_add_u32 s100, s100, {s.h}')
        A('s_lshl_b32 s100, s100, 6')
        A('s_add_u32 s100, s100, 0x2000000')
        for i in range(8):
            A(f'v_mov_b32 v{40+i}, s{s_stamp+i}')
        A('v_mov_b32 v48, 0')
        A('s_mov_b64 exec, 1')
        A(f'buffer_store_dwordx4 v[40:43], v48, {srd(sWS)}, s100 offen')
        A(f'buffer_store_dwordx4 v[44:47], v48, {srd(sWS)}, s100 offen offset:16')
        A('s_mov_b64 exec, -1')

hdr = open('standalone__paged_block_table_kv_pagedattention__sampling.s.ref').read().split('\n')
for line in hdr:
    if line.startswith('; @launch'):
        L.append(f'; @launch grid=({NWG},1,1) block=(512,1,1) lds={LDS_TOTAL}')
        break
    L.append(line)
L.append('.amdgcn_target "amdgcn-amd-amdhsa--gfx950"')
L.append('.text')
L.append(f'.globl {KN}')
L.append('.p2align 8')
L.append(f'.type {KN},@function')
LB(KN)
A(f's_cmp_ge_u32 s2, {NWG}')
A('s_cbranch_scc1 L_end')
if STAMPS:
    A('s_memrealtime s[98:99]')
A(f's_load_dwordx16 s[{KA}:{KA+15}], s[0:1], 0')
A(f'v_lshrrev_b32 {V(vT0)}, 6, v0')
A(f'v_and_b32 {V(vLane)}, 63, v0')
A(f'v_readfirstlane_b32 {s.h}, {V(vT0)}')
C('lane constants')
A(f'v_lshrrev_b32 {V(vT0)}, 5, {V(vLane)}')
A(f'v_and_b32 {V(vT1)}, 31, {V(vLane)}')
A(f'v_lshlrev_b32 {V(vT2)}, 4, {V(vT1)}')
A(f'v_lshl_add_u32 {V(vKVoff)}, {V(vT0)}, 15, {V(vT2)}')
A(f'v_lshl_add_u32 {V(vOutOff)}, {V(vT0)}, 9, {V(vT2)}')
A(f'v_lshlrev_b32 {V(vT2)}, 5, {V(vT1)}')
A(f'v_lshl_add_u32 {V(vPoff)}, {V(vT0)}, 10, {V(vT2)}')
A(f'v_and_b32 {V(vT2)}, 15, {V(vLane)}')
A(f'v_lshlrev_b32 {V(vT2)}, 7, {V(vT2)}')
A(f'v_lshl_add_u32 {V(vStOff)}, {V(vT0)}, 3, {V(vT2)}')
A(f'v_lshlrev_b32 {V(vQoff)}, 4, {V(vLane)}')
A(f'v_lshlrev_b32 {V(vLane4)}, 2, {V(vLane)}')
A(f'v_lshrrev_b32 {V(vT0)}, 4, {V(vLane)}')
A(f'v_lshlrev_b32 {V(vTok)}, 2, {V(vT0)}')
A(f'v_lshlrev_b32 {V(vT2)}, 4, {V(vT0)}')
A(f'v_bfe_u32 {V(vT1)}, {V(vLane)}, 3, 1')
A(f'v_lshl_add_u32 {V(vT3)}, {V(vT1)}, 9, {V(vT2)}')
A(f'v_and_b32 {V(vT1)}, 7, {V(vLane)}')
A(f'v_mul_u32_u24 {V(vT1)}, 1056, {V(vT1)}')
A(f's_mul_i32 {s.ldsK}, {s.h}, {KSLOT}')
A(f's_add_u32 {s.ldsK}, {s.ldsK}, {LDS_K}')
A(f's_lshl_b32 {s.qoffw}, {s.h}, 10')
A(f's_add_u32 {s.ldsQ}, {s.qoffw}, {LDS_Q}')
A(f'v_add3_u32 {V(vKrd)}, {V(vT3)}, {V(vT1)}, {s.ldsK}')
A(f'v_and_b32 {V(vT1)}, 1, {V(vLane)}')
A(f'v_lshl_add_u32 {V(vT2)}, {V(vT1)}, 9, {V(vT2)}')
A(f'v_add_u32 {V(vQrd)}, {s.ldsQ}, {V(vT2)}')
A(f'v_mov_b32 {V(vNegInf)}, 0xff800000')
A(f's_lshl_b32 {s.hoffw}, {s.h}, 9')
A(f's_mov_b32 {s.sel0}, 0x05040100')
A(f's_mov_b32 {s.sel1}, 0x07060302')
A(f's_lshr_b32 {s.g}, s2, 3')
A(f's_and_b32 {s.j}, s2, 7')
A(f's_lshl_b32 {s.hoffo}, {s.j}, 9')
A(f's_and_b32 {s.shift}, {s.h}, 3')
A(f's_lshl_b32 {s.shift}, {s.shift}, 3')
A(f's_mov_b32 {s.seg}, 0')
A(f's_mov_b32 {s.pendcnt}, 0')
A(f's_mov_b32 {s.pf}, 0')
A(f's_mov_b32 {s.chkpend}, 0')
A(f's_mov_b32 {s.first}, 1')
A(f's_mov_b32 {s.segcnt}, 0')
A(f'v_mov_b32 {V(vMBa)}, {LDS_MB}')
A(f'v_and_b32 {V(vT3)}, 124, {V(vLane4)}')
A(f'v_mov_b32 {V(vT0)}, 8')
A(f's_lshl_b32 {s.t0}, {s.h}, 11')
A(f'v_mov_b32 {V(vT1)}, 0')
A(f'ds_write_b64 {V(vMBa)}, {VR(vT0,2)}')
A('s_waitcnt lgkmcnt(0)')
def mksrd(b, ka, nbytes):
    A(f's_mov_b32 s{b}, s{KA+ka}')
    A(f's_and_b32 s{b+1}, s{KA+ka+1}, 0xffff')
    A(f's_mov_b32 s{b+2}, {nbytes}')
    A(f's_mov_b32 s{b+3}, 0x20000')
mksrd(sCL, 8, 128)
mksrd(sBT, 6, 16384)
A(f'buffer_load_dword {V(vCl)}, {V(vT3)}, {srd(sCL)}, 0 offen')
A(f's_mov_b32 m0, {s.t0}')
mksrd(sK, 2, KV_BYTES)
A(f'buffer_load_dwordx4 {V(vQoff)}, {srd(sBT)}, {s.t0} offen lds')
A(f'buffer_load_dwordx4 {V(vQoff)}, {srd(sBT)}, {s.t0} offen offset:1024 lds')
mksrd(sV, 4, KV_BYTES)
mksrd(sQ, 0, 32 * 16 * 512)
mksrd(sWS, 14, WS_BYTES)
mksrd(sDBG, 12, 256)
mksrd(sOUT, 10, 32 * 16 * 512)
if STAMPS:
    A(f's_mov_b32 s{s_stamp}, s98')
stamp(1)
A('s_waitcnt vmcnt(2)')
C('effective context length, blocks per sequence, scale')
A(f'v_add_u32 {V(vT0)}, -1, {V(vCl)}')
A(f'v_mov_b32 {V(vT1)}, 2048')
A(f'v_cmp_gt_u32 vcc, {V(vT1)}, {V(vT0)}')
A(f'v_cmp_ge_i32 {T2P}, 0, {V(vCl)}')
A(f'v_mov_b32 {V(vT2)}, {f32(SCALE)}')
A(f'v_cndmask_b32 {V(vCl)}, {V(vT1)}, {V(vCl)}, vcc')
A(f'v_cndmask_b32 {V(vSc)}, {V(vT2)}, 0, {T2P}')
A(f'v_add_u32 {V(vNb)}, 15, {V(vCl)}')
A(f'v_lshrrev_b32 {V(vNb)}, 4, {V(vNb)}')
def scan(v):
    for sh in (1, 2, 4, 8):
        A('s_nop 1')
        A(f'v_add_u32_dpp {V(v)}, {V(v)}, {V(v)} row_shr:{sh} row_mask:0xf bank_mask:0xf bound_ctrl:0')
    A('s_nop 1')
    A(f'v_add_u32_dpp {V(v)}, {V(v)}, {V(v)} row_bcast:15 row_mask:0xa bank_mask:0xf')
A(f'v_mov_b32 {V(vT0)}, {V(vNb)}')
A(f'v_lshrrev_b32 {V(vT4)}, 5, {V(vLane)}')
scan(vT0)
A(f'v_lshlrev_b32 {V(vT4)}, 2, {V(vT4)}')
A(f'v_readlane_b32 {s.T}, {V(vT0)}, 31')
A(f'v_sub_u32 {V(vT4)}, {V(vT4)}, {V(vNb)}')
A(f's_add_u32 {s.t0}, {s.T}, 31')
A(f's_lshr_b32 {s.t0}, {s.t0}, 5')
C('smallest budget Lm = C + d (d = 0..7) whose whole helper rounds cover the excess')
cand = [vEx, vSp, vEXe, vSPe]
A(f'v_add_u32 {V(vT4)}, {s.t0}, {V(vT4)}')
for r in range(4):
    A(f'v_add_u32 {V(vT1)}, {r}, {V(vT4)}')
    A(f'v_and_b32 {V(vT2)}, -8, {V(vT1)}')
    A(f'v_min_i32 {V(vT1)}, 0, {V(vT1)}')
    A(f'v_max_i32 {V(cand[r])}, {V(vT1)}, {V(vT2)}')
for sh in (1, 2, 4, 8):
    for r in range(4):
        A(f'v_add_u32_dpp {V(cand[r])}, {V(cand[r])}, {V(cand[r])} row_shr:{sh} row_mask:0xf bank_mask:0xf bound_ctrl:0')
for r in range(4):
    A(f'v_add_u32_dpp {V(cand[r])}, {V(cand[r])}, {V(cand[r])} row_bcast:15 row_mask:0xa bank_mask:0xf')
A(f's_mov_b32 {s.t1}, 7')
for d in (6, 5, 4, 3, 2, 1, 0):
    A(f'v_readlane_b32 {s.t2}, {V(cand[d&3])}, {63 if d >= 4 else 31}')
    A(f's_cmp_ge_i32 {s.t2}, 0')
    A(f's_cselect_b32 {s.t1}, {d}, {s.t1}')
A(f's_add_u32 {s.t0}, {s.t0}, {s.t1}')
A(f'v_min_u32 {V(vT1)}, {s.t0}, {V(vNb)}')
A(f'v_sub_u32 {V(vEx)}, {V(vNb)}, {V(vT1)}')
A(f'v_sub_u32 {V(vSp)}, {s.t0}, {V(vT1)}')
A(f'v_and_b32 {V(vSp)}, -8, {V(vSp)}')
A(f'v_min_u32 {V(vT2)}, 8, {V(vSp)}')
A(f'v_lshl_or_b32 {V(vT0)}, {V(vSp)}, 12, {V(vEx)}')
A(f'v_lshl_or_b32 {V(vT0)}, {V(vT2)}, 24, {V(vT0)}')
scan(vT0)
A(f'v_readlane_b32 {s.own}, {V(vT1)}, {s.g}')
A(f'v_readlane_b32 {s.t1}, {V(vSp)}, {s.g}')
A(f'v_and_b32 {V(vEXe)}, 0xfff, {V(vT0)}')
A(f'v_bfe_u32 {V(vSPe)}, {V(vT0)}, 12, 12')
A(f'v_lshrrev_b32 {V(vRKs)}, 24, {V(vT0)}')
A(f'v_readlane_b32 {s.EXT}, {V(vEXe)}, 31')
A(f'v_readlane_b32 {s.t2}, {V(vSPe)}, {s.g}')
A(f'v_readlane_b32 {s.exg}, {V(vEx)}, {s.g}')
A(f'v_readlane_b32 {s.clg}, {V(vCl)}, {s.g}')
A(f'v_sub_u32 {V(vRKs)}, {V(vRKs)}, {V(vT2)}')
A(f'v_and_b32 {V(vRKs)}, 0xff, {V(vRKs)}')
A(f's_sub_u32 {s.t2}, {s.t2}, {s.t1}')
A(f's_mul_i32 {s.t3}, {s.t1}, {s.j}')
A(f's_add_u32 {s.xe}, {s.t3}, {s.t1}')
A(f's_lshr_b32 {s.t3}, {s.t3}, 3')
A(f's_lshr_b32 {s.xe}, {s.xe}, 3')
A(f's_cmp_ge_u32 {s.t1}, 8')
A(f's_cselect_b32 {s.rank}, {s.j}, {s.t3}')
A(f's_add_u32 {s.x}, {s.t3}, {s.t2}')
A(f's_add_u32 {s.xe}, {s.xe}, {s.t2}')
A(f's_min_u32 {s.x}, {s.x}, {s.EXT}')
A(f's_min_u32 {s.xe}, {s.xe}, {s.EXT}')

lab = [0]
def decode_next(pro):
    lab[0] += 1; n = lab[0]
    A(f's_cmp_ge_u32 {s.x}, {s.xe}')
    A(f's_cbranch_scc1 L_dn_own{n}')
    A(f'v_cmp_ge_u32 vcc, {s.x}, {V(vEXe)}')
    A(f's_bcnt1_i32_b32 {s.nseq}, vcc_lo')
    A(f'v_readlane_b32 {s.t0}, {V(vEXe)}, {s.nseq}')
    A(f'v_readlane_b32 {s.t1}, {V(vEx)}, {s.nseq}')
    A(f's_sub_u32 {s.t0}, {s.t0}, {s.t1}')
    A(f's_sub_u32 {s.nblk}, {s.x}, {s.t0}')
    A(f's_add_u32 {s.x}, {s.x}, 1')
    A(f's_mov_b32 {s.nph}, 1')
    A(f's_branch L_dn_bt{n}')
    LB(f'L_dn_own{n}')
    A(f's_mov_b32 {s.t0}, {s.h}')
    if not pro:
        A(f's_cmp_lg_u32 {s.first}, 0')
        A(f's_cbranch_scc1 L_dn_idx{n}')
        A('s_waitcnt lgkmcnt(0)')
        A(f'v_readfirstlane_b32 {s.t1}, {V(vPick)}')
        A(f's_and_b32 {s.t0}, {s.t1}, 0xffff')
        A(f's_lshr_b32 {s.t1}, {s.t1}, 16')
        A(f's_or_b32 {s.pf}, {s.pf}, {s.t1}')
        A(f's_cmp_eq_u32 {s.t0}, {s.chk}')
        A(f's_cselect_b32 {s.chkpend}, 2, {s.chkpend}')
        LB(f'L_dn_idx{n}')
    A(f's_mov_b32 {s.first}, 0')
    A(f's_mov_b32 {s.nseq}, {s.g}')
    A(f's_add_u32 {s.nblk}, {s.exg}, {s.t0}')
    A(f's_cmp_lt_u32 {s.t0}, {s.own}')
    A(f's_cselect_b32 {s.nph}, 0, 2')
    A(f's_cselect_b32 {s.nblk}, {s.nblk}, 0')
    LB(f'L_dn_bt{n}')
    A(f's_lshl_b32 {s.t0}, {s.nseq}, 7')
    A(f's_add_u32 {s.t0}, {s.t0}, {s.nblk}')
    A(f's_lshl_b32 {s.t0}, {s.t0}, 2')
    A(f'v_mov_b32 {V(vT0)}, {s.t0}')
def decode_fin():
    A(f'v_readfirstlane_b32 {s.nxt}, {V(vBT)}')
    A(f's_cmp_eq_u32 {s.nph}, 1')
    A(f's_cselect_b32 {s.t0}, {s.hoffw}, {s.hoffo}')
    A(f's_lshl_b32 {s.nxt}, {s.nxt}, 16')
    A(f's_add_u32 {s.nxt}, {s.nxt}, {s.t0}')
    A(f's_cmp_eq_u32 {s.nph}, 2')
    A(f's_cselect_b32 {s.nxt}, {OOB_KV}, {s.nxt}')
def q_dma():
    A(f's_cmp_eq_u32 {s.nph}, 1')
    A(f's_cselect_b32 {s.t1}, {s.hoffw}, {s.hoffo}')
    A(f's_lshl_b32 {s.t1}, {s.t1}, 1')
    A(f's_lshl_b32 {s.t2}, {s.nseq}, 13')
    A(f's_mov_b32 m0, {s.ldsQ}')
    A(f's_add_u32 {s.t1}, {s.t1}, {s.t2}')
    A(f'buffer_load_dwordx4 {V(vQoff)}, {srd(sQ)}, {s.t1} offen lds')
def k_dma(j):
    r = []
    if j == 0:
        r.append(f's_mov_b32 m0, {s.ldsK}')
        r.append(f's_mov_b32 {s.t3}, {s.nxt}')
    else:
        r.append('s_add_u32 m0, m0, 1056')
        r.append(f's_add_u32 {s.t3}, {s.t3}, 4096')
    r.append(f'buffer_load_dwordx4 {V(vKVoff)}, {srd(sK)}, {s.t3} offen {NT} lds')
    return r
def v_load(j):
    r = []
    if j == 0:
        r.append(f'buffer_load_dwordx4 {VR(vV, 4)}, {V(vKVoff)}, {srd(sV)}, {s.cur} offen {NT}')
    else:
        r.append(f's_add_u32 {s.t3}, {s.cur}, {4096*j}')
        r.append(f'buffer_load_dwordx4 {VR(vV+4*j, 4)}, {V(vKVoff)}, {srd(sV)}, {s.t3} offen {NT}')
    return r

decode_next(True)
A('s_waitcnt vmcnt(0)')
A('s_barrier')
stamp(2)
A(f'ds_read_b32 {V(vBT)}, {V(vT0)}')
q_dma()
A('s_waitcnt lgkmcnt(0)')
decode_fin()
for j in range(8):
    for x in k_dma(j): A(x)

C('off the critical path: own slot rank, helper count and first slot of the own sequence')
A(f'v_readlane_b32 {s.t0}, {V(vRKs)}, {s.g}')
A(f's_add_u32 {s.rank}, {s.rank}, {s.t0}')
def rank_of(xs, dst):
    A(f'v_cmp_ge_u32 vcc, {xs}, {V(vSPe)}')
    A(f's_bcnt1_i32_b32 {s.t1}, vcc_lo')
    A(f's_min_u32 {s.t1}, {s.t1}, 31')
    A(f'v_readlane_b32 {s.t2}, {V(vSPe)}, {s.t1}')
    A(f'v_readlane_b32 {s.t3}, {V(vSp)}, {s.t1}')
    A(f'v_readlane_b32 {dst}, {V(vRKs)}, {s.t1}')
    A(f's_sub_u32 {s.t2}, {s.t2}, {s.t3}')
    A(f's_sub_u32 {s.t2}, {xs}, {s.t2}')
    A(f'v_mul_u32_u24 {V(vT0)}, {s.t3}, {V(vLane)}')
    A(f'v_lshrrev_b32 {V(vT0)}, 3, {V(vT0)}')
    A(f'v_cmp_ge_u32 vcc, {s.t2}, {V(vT0)}')
    A(f's_and_b32 {s.t1}, vcc_lo, 0xfe')
    A(f's_bcnt1_i32_b32 {s.t1}, {s.t1}')
    A(f's_cmp_ge_u32 {s.t3}, 8')
    A(f's_cselect_b32 {s.t1}, {s.t1}, {s.t2}')
    A(f's_add_u32 {dst}, {dst}, {s.t1}')
def helper_span(sb):
    A(f'v_readlane_b32 {s.t0}, {V(vEXe)}, {sb}')
    A(f'v_readlane_b32 {s.k0}, {V(vEx)}, {sb}')
    A(f's_sub_u32 {s.k0}, {s.t0}, {s.k0}')
    A(f's_sub_u32 {s.t0}, {s.t0}, 1')
    rank_of(s.t0, s.n)
    rank_of(s.k0, s.slot0)
    A(f's_sub_u32 {s.n}, {s.n}, {s.slot0}')
    A(f's_add_u32 {s.n}, {s.n}, 1')
    A(f's_add_u32 {s.slot0}, {s.slot0}, {sb}')
helper_span(s.g)
A(f's_cmp_eq_u32 {s.exg}, 0')
A(f's_cselect_b32 {s.n}, 0, {s.n}')
A(f's_cselect_b32 {s.pf}, 3, 0')
A(f's_sub_u32 {s.chk}, {s.own}, {CHK}')
A(f's_max_i32 {s.chk}, {s.chk}, 8')
A(f's_cmp_eq_u32 {s.exg}, 0')
A(f's_cselect_b32 {s.chk}, 0xffff, {s.chk}')
C('slice of a partial record this wave combines: head h>>2, d = (h&3)*64 + lane')
A(f's_lshl_b32 {s.t0}, {s.h}, 8')
A(f'v_add_u32 {V(vSlOff)}, {s.t0}, {V(vLane4)}')
for r in range(32):
    A(f'v_mov_b32 {V(vAcc+r)}, 0')
A(f'v_mov_b32 {V(vM)}, {f32(-1e30)}')
A(f'v_mov_b32 {V(vL)}, 0')
A(f'v_mov_b32 {V(vRet)}, 0')
A(f'v_mov_b32 {V(vSegB)}, 0')
A(f's_mov_b32 {s.c}, 0')
stamp(3)
A(f's_cmp_eq_u32 {s.nph}, 2')
A('s_cbranch_scc1 L_own_done')
A('s_branch L_newseg')

def merge_halves():
    A(f'v_mov_b32 {V(vT0)}, {V(vL)}')
    A(f'v_mov_b32 {V(vT1)}, {V(vM)}')
    A(f'v_mov_b32 {V(vT2)}, {V(vM)}')
    A('s_nop 0')
    A(f'v_permlane16_swap_b32 {V(vL)}, {V(vT0)}')
    A(f'v_permlane32_swap_b32 {V(vT1)}, {V(vT2)}')
    A(f'v_add_f32 {V(vL)}, {V(vL)}, {V(vT0)}')
    A(f'v_max_f32 {V(vMn)}, {V(vT1)}, {V(vT2)}')
    A(f'v_sub_f32 {V(vT2)}, {V(vM)}, {V(vMn)}')
    A(f'v_mul_f32 {V(vT2)}, {s.c}, {V(vT2)}')
    A(f'v_exp_f32 {V(vT2)}, {V(vT2)}')
    A(f'v_mul_f32 {V(vT4)}, {s.c}, {V(vMn)}')
    A('s_nop 0')
    A(f'v_mul_f32 {V(vL)}, {V(vL)}, {V(vT2)}')
    for e in range(8):
        A(f'v_mul_f32_dpp {V(vAcc+4*e)}, {V(vT2)}, {V(vAcc+4*e)} quad_perm:[0,0,2,2] row_mask:0xf bank_mask:0xf')
        A(f'v_mul_f32_dpp {V(vAcc+4*e+1)}, {V(vT2)}, {V(vAcc+4*e+1)} quad_perm:[1,1,3,3] row_mask:0xf bank_mask:0xf')
    A(f'v_mov_b32 {V(vT0)}, {V(vL)}')
    A('s_nop 1')
    A(f'v_permlane32_swap_b32 {V(vL)}, {V(vT0)}')
    for e in range(8):
        A(f'v_permlane32_swap_b32 {V(vAcc+4*e)}, {V(vAcc+4*e+1)}')
    A(f'v_add_f32 {V(vT5)}, {V(vL)}, {V(vT0)}')
    for e in range(8):
        A(f'v_add_f32 {V(vKf+e)}, {V(vAcc+4*e)}, {V(vAcc+4*e+1)}')
    A(f'v_lshlrev_b32 {V(vT0)}, 3, {V(vLane)}')

def signal(sb, scnt, head_is_wave=True):
    hh = s.h if head_is_wave else s.j
    A(f's_lshl_b32 {s.t0}, {sb}, 3')
    A(f's_and_b32 {s.t1}, {hh}, 4')
    A(f's_add_u32 {s.t0}, {s.t0}, {s.t1}')
    A(f's_and_b32 {s.t1}, {hh}, 3')
    A(f's_lshl_b32 {s.t1}, {s.t1}, 3')
    A(f's_lshl_b32 {s.t1}, {scnt}, {s.t1}')
    A(f's_lshl_b32 {s.t2}, {scnt}, 8')
    A(f's_or_b32 {s.t2}, {s.t2}, {sb}')
    A(f'v_mov_b32 {V(vT2)}, {s.t0}')
    A(f's_lshl_b64 exec, 1, {s.seg}')
    A(f'v_mov_b32 {V(vSegB)}, {s.t2}')
    A(f'v_mov_b32 {V(vRet)}, {s.t1}')
    A(f'buffer_atomic_add {V(vRet)}, {V(vT2)}, {srd(sDBG)}, 0 offen sc0')
    A('s_mov_b64 exec, -1')
    A(f's_add_u32 {s.seg}, {s.seg}, 1')

def chk_issue():
    A(f's_lshl_b32 {s.t0}, {s.g}, 3')
    A(f's_and_b32 {s.t1}, {s.j}, 4')
    A(f's_add_u32 {s.t0}, {s.t0}, {s.t1}')
    A(f'v_mov_b32 {V(vT2)}, {s.t0}')
    A(f'buffer_load_dword {V(vChk)}, {V(vT2)}, {srd(sDBG)}, 0 offen sc1')
def chk_eval(tag):
    A(f'v_readfirstlane_b32 {s.t0}, {V(vChk)}')
    A(f's_and_b32 {s.t1}, {s.j}, 3')
    A(f's_lshl_b32 {s.t1}, {s.t1}, 3')
    A(f's_lshr_b32 {s.t0}, {s.t0}, {s.t1}')
    A(f's_and_b32 {s.t0}, {s.t0}, 0xff')
    if OPT['forceslow'] == '1':
        A(f's_add_u32 {s.t0}, {s.t0}, 1000')
    A(f's_cmp_lg_u32 {s.t0}, {s.exg}')
    A(f's_cbranch_scc1 L_chkno{tag}')
    A(f'v_mov_b32 {V(vT2)}, 0x10000')
    A(f'ds_or_b32 {V(vMBa)}, {V(vT2)}' + (' offset:4' if tag == 'c' else ''))
    LB(f'L_chkno{tag}')
def pf_issue():
    A(f's_lshl_b32 {s.t0}, {s.slot}, 3')
    A(f's_add_u32 {s.t0}, {s.t0}, {s.j}')
    A(f's_lshl_b32 {s.t0}, {s.t0}, 4')
    A(f's_add_u32 {s.t0}, {s.t0}, {STATS}')
    A(f's_and_b32 {s.t2}, {s.h}, 4')
    A(f's_lshl_b32 {s.t2}, {s.t2}, 1')
    A(f's_add_u32 {s.t0}, {s.t0}, {s.t2}')
    A(f'v_and_b32 {V(vT0)}, 15, {V(vLane)}')
    A(f'v_cmp_gt_u32 vcc, {s.t1}, {V(vT0)}')
    A(f'v_lshlrev_b32 {V(vT0)}, 7, {V(vT0)}')
    A(f'v_mov_b32 {V(vT1)}, {OOB_WS}')
    A(f's_lshl_b32 {s.t2}, {s.slot}, 14')
    A(f'v_cndmask_b32 {V(vT1)}, {V(vT1)}, {V(vT0)}, vcc')
    A(f's_lshl_b32 {s.t3}, {s.j}, 11')
    A(f's_add_u32 {s.t2}, {s.t2}, {s.t3}')
    A(f'buffer_load_dwordx2 {VR(vYS,2)}, {V(vT1)}, {srd(sWS)}, {s.t0} offen sc1')
    for k in range(16):
        A(f's_cmp_gt_u32 {s.t1}, {k}')
        A(f's_cselect_b32 {s.t3}, {s.t2}, {OOB_WS}')
        A(f'buffer_load_dword {V(vY+k)}, {V(vSlOff)}, {srd(sWS)}, {s.t3} offen sc1')
        A(f's_add_u32 {s.t2}, {s.t2}, 16384')

LB('L_switch')
merge_halves()
A(f's_add_u32 {s.t0}, {s.rank}, {s.cb}')
A(f's_lshl_b32 {s.t1}, {s.t0}, 14')
A(f's_lshl_b32 {s.t2}, {s.h}, 11')
A(f's_add_u32 {s.t1}, {s.t1}, {s.t2}')
A(f's_lshl_b32 {s.t0}, {s.t0}, 3')
A(f's_add_u32 {s.t0}, {s.t0}, {s.h}')
A(f's_lshl_b32 {s.t0}, {s.t0}, 4')
A(f's_add_u32 {s.t0}, {s.t0}, {STATS}')
A(f'buffer_store_dwordx4 {VR(vKf,4)}, {V(vPoff)}, {srd(sWS)}, {s.t1} offen sc1')
A(f'buffer_store_dwordx4 {VR(vKf+4,4)}, {V(vPoff)}, {srd(sWS)}, {s.t1} offen offset:16 sc1')
A('s_mov_b64 exec, 3')
A(f'buffer_store_dwordx2 {VR(vT4,2)}, {V(vT0)}, {srd(sWS)}, {s.t0} offen sc1')
A('s_mov_b64 exec, -1')
A(f's_mov_b32 {s.pendb}, {s.cb}')
A(f's_mov_b32 {s.pendcnt}, {s.segcnt}')
A(f's_mov_b32 {s.segcnt}, 0')
for e in range(8):
    A(f'v_mov_b32 {V(vAcc+4*e)}, 0')
    A(f'v_mov_b32 {V(vAcc+4*e+1)}, 0')
A(f'v_mov_b32 {V(vM)}, {f32(-1e30)}')
A(f'v_mov_b32 {V(vL)}, 0')
A(f's_cmp_eq_u32 {s.nph}, 2')
A('s_cbranch_scc1 L_own_done')
LB('L_newseg')
A(f'v_readlane_b32 {s.c}, {V(vSc)}, {s.nseq}')
A(f's_mov_b32 {s.needq}, 1')

LB('L_loop')
A(f's_mov_b32 {s.cur}, {s.nxt}')
A(f's_mov_b32 {s.cb}, {s.nseq}')
A(f's_mov_b32 {s.cblk}, {s.nblk}')
A(f's_mov_b32 {s.cph}, {s.nph}')
A(f's_add_u32 {s.segcnt}, {s.segcnt}, 1')
A('s_waitcnt vmcnt(0)')
A(f's_cmp_eq_u32 {s.cph}, 0')
A('s_cbranch_scc1 L_nobar')
A('s_barrier')
LB('L_nobar')
for j in range(8):
    for x in v_load(j): A(x)
C('take the next own block')
A(f's_cmp_lt_u32 {s.x}, {s.xe}')
A('s_cbranch_scc1 L_nopick')
A(f's_cmp_lg_u32 {s.first}, 0')
A('s_cbranch_scc1 L_nopick')
A(f'v_mov_b32 {V(vT0)}, 1')
A('s_mov_b64 exec, 1')
A(f'ds_add_rtn_u32 {V(vPick)}, {V(vMBa)}, {V(vT0)}')
A('s_mov_b64 exec, -1')
LB('L_nopick')
A(f's_cmp_eq_u32 {s.pendcnt}, 0')
A('s_cbranch_scc1 L_nopend')
signal(s.pendb, s.pendcnt)
A(f's_mov_b32 {s.pendcnt}, 0')
LB('L_nopend')
A(f's_cmp_lg_u32 {s.chkpend}, 1')
A('s_cbranch_scc1 L_nochk')
chk_eval('a')
A(f's_mov_b32 {s.chkpend}, 0')
LB('L_nochk')
A(f's_cmp_eq_u32 {s.needq}, 0')
A('s_cbranch_scc1 L_noq')
for j in range(8):
    A(f'ds_read_b128 {VR(vQ+4*j, 4)}, {V(vQrd)} offset:{64*j}')
A(f's_mov_b32 {s.needq}, 0')
LB('L_noq')
for j in range(8):
    A(f'ds_read_b128 {VR(vKf+4*j, 4)}, {V(vKrd)} offset:{64*j}')
for j in range(8):
    A(f's_waitcnt lgkmcnt({7-j})')
    A(f'v_mfma_f32_16x16x32_bf16 {VR(vS,4)}, {VR(vKf+4*j,4)}, {VR(vQ+4*j,4)}, {VR(vS,4) if j else 0}')
decode_next(False)
A(f'ds_read_b32 {V(vBT)}, {V(vT0)}')
C('mask the tail of the last block of the own sequence')
A(f's_lshl_b32 {s.t0}, {s.cblk}, 4')
A(f's_sub_u32 {s.t0}, {s.clg}, {s.t0}')
A(f's_cmp_lg_u32 {s.cph}, 0')
A('s_cbranch_scc1 L_nomask')
A(f's_cmp_ge_u32 {s.t0}, 16')
A('s_cbranch_scc1 L_nomask')
for i in range(4):
    A(f'v_cmp_gt_i32 vcc, {s.t0}, {V(vTok)}')
    A(f's_sub_u32 {s.t0}, {s.t0}, 1')
    A('s_nop 0')
    A(f'v_cndmask_b32 {V(vS+i)}, {V(vNegInf)}, {V(vS+i)}, vcc')
LB('L_nomask')
A(f'v_max3_f32 {V(vT0)}, {V(vS)}, {V(vS+1)}, {V(vS+2)}')
A(f'v_max_f32 {V(vT0)}, {V(vT0)}, {V(vS+3)}')
A(f'v_mov_b32 {V(vT1)}, {V(vT0)}')
A('s_nop 1')
A(f'v_permlane16_swap_b32 {V(vT0)}, {V(vT1)}')
A(f'v_max3_f32 {V(vMn)}, {V(vT0)}, {V(vT1)}, {V(vM)}')
A(f'v_cmp_gt_f32 vcc, {V(vMn)}, {V(vM)}')
A('s_cbranch_vccz L_norescale')
A(f'v_sub_f32 {V(vT2)}, {V(vM)}, {V(vMn)}')
A(f'v_mul_f32 {V(vT2)}, {s.c}, {V(vT2)}')
A(f'v_exp_f32 {V(vT2)}, {V(vT2)}')
A(f'v_mov_b32 {V(vM)}, {V(vMn)}')
A('s_nop 0')
A(f'v_mul_f32 {V(vL)}, {V(vL)}, {V(vT2)}')
for e in range(8):
    A(f'v_mul_f32_dpp {V(vAcc+4*e)}, {V(vT2)}, {V(vAcc+4*e)} quad_perm:[0,0,2,2] row_mask:0xf bank_mask:0xf')
    A(f'v_mul_f32_dpp {V(vAcc+4*e+1)}, {V(vT2)}, {V(vAcc+4*e+1)} quad_perm:[1,1,3,3] row_mask:0xf bank_mask:0xf')
LB('L_norescale')
A(f'v_mul_f32 {V(vT0)}, {s.c}, {V(vM)}')
for i in range(4):
    A(f'v_fma_f32 {V(vS+i)}, {V(vS+i)}, {s.c}, -{V(vT0)}')
for i in range(4):
    A(f'v_exp_f32 {V(vS+i)}, {V(vS+i)}')
A('s_waitcnt lgkmcnt(0)')
decode_fin()
A(f'v_add_f32 {V(vT0)}, {V(vS)}, {V(vS+1)}')
A(f'v_add_f32 {V(vT1)}, {V(vS+2)}, {V(vS+3)}')
A(f'v_cvt_pk_bf16_f32 {V(vPk)}, {V(vS)}, {V(vS+1)}')
A(f'v_cvt_pk_bf16_f32 {V(vPk+1)}, {V(vS+2)}, {V(vS+3)}')
A(f'v_add_f32 {V(vT0)}, {V(vT0)}, {V(vT1)}')
A(f'v_add_f32 {V(vL)}, {V(vL)}, {V(vT0)}')
A('s_waitcnt vmcnt(0)')
for j in range(8):
    for x in k_dma(j): A(x)
C('segment change ahead: s.i = 1; fetch its Q')
A(f's_cmp_lg_u32 {s.nseq}, {s.cb}')
A(f's_cselect_b32 {s.i}, 1, 0')
A(f's_cmp_lg_u32 {s.nph}, {s.cph}')
A(f's_cselect_b32 {s.i}, 1, {s.i}')
A(f's_cmp_eq_u32 {s.i}, 0')
A('s_cbranch_scc1 L_sameseg')
q_dma()
LB('L_sameseg')
A(f's_cmp_lg_u32 {s.chkpend}, 2')
A('s_cbranch_scc1 L_nochk2')
chk_issue()
A(f's_mov_b32 {s.chkpend}, 1')
LB('L_nochk2')
A(f's_cmp_lg_u32 {s.pf}, 1')
A('s_cbranch_scc1 L_nopf')
A(f's_mov_b32 {s.slot}, {s.slot0}')
A(f's_mov_b32 {s.t1}, {s.n}')
pf_issue()
A(f's_mov_b32 {s.pf}, 3')
LB('L_nopf')
def perms(g):
    r = []
    for rr in range(4):
        for q in range(2):
            e = 2*rr + q
            sel = s.sel1 if q else s.sel0
            d = vKf + 16*g + 2*e
            r.append(f'v_perm_b32 {V(d)}, {V(vV+4*(4*g+1)+rr)}, {V(vV+4*(4*g)+rr)}, {sel}')
            r.append(f'v_perm_b32 {V(d+1)}, {V(vV+4*(4*g+3)+rr)}, {V(vV+4*(4*g+2)+rr)}, {sel}')
    return r
def pv(g, e):
    return f'v_mfma_f32_4x4x4_16b_bf16 {VR(vAcc+4*e,4)}, {VR(vPk,2)}, {VR(vKf+16*g+2*e,2)}, {VR(vAcc+4*e,4)} cbsz:3 abid:{4*g}'
for x in perms(0): A(x)
p1 = perms(1)
for e in range(8):
    A(pv(0, e))
    A(p1[2*e]); A(p1[2*e+1])
A('s_nop 0')
for e in range(8):
    A(pv(1, e))
A(f's_cmp_eq_u32 {s.i}, 0')
A('s_cbranch_scc1 L_loop')
A(f's_cmp_lg_u32 {s.cph}, 0')
A('s_cbranch_scc1 L_switch')

LB('L_own_done')
A(f'v_readlane_b32 {s.c}, {V(vSc)}, {s.g}')
stamp(4)
merge_halves()
A(f'v_add_u32 {V(vT1)}, {s.ldsK}, {V(vPoff)}')
A(f'v_add_u32 {V(vT0)}, {s.ldsK}, {V(vT0)}')
A('s_waitcnt vmcnt(0)')
A(f'ds_write_b128 {V(vT1)}, {VR(vKf,4)}')
A(f'ds_write_b128 {V(vT1)}, {VR(vKf+4,4)} offset:16')
A('s_mov_b64 exec, 3')
A(f'ds_write_b64 {V(vT0)}, {VR(vT4,2)} offset:2048')
A('s_mov_b64 exec, -1')
A(f's_cmp_eq_u32 {s.pendcnt}, 0')
A('s_cbranch_scc1 L_nopend2')
signal(s.pendb, s.pendcnt)
A(f's_mov_b32 {s.pendcnt}, 0')
LB('L_nopend2')
A(f's_cmp_lg_u32 {s.chkpend}, 1')
A('s_cbranch_scc1 L_nochk3')
chk_eval('b')
LB('L_nochk3')
C('LDS addresses of the final merge')
A(f'v_and_b32 {V(vT0)}, 7, {V(vLane)}')
A(f'v_mul_u32_u24 {V(vT0)}, {KSLOT}, {V(vT0)}')
A(f's_and_b32 {s.t0}, {s.h}, 4')
A(f's_lshl_b32 {s.t0}, {s.t0}, 1')
A(f's_add_u32 {s.t0}, {s.t0}, {LDS_K + 2048}')
A(f'v_add_u32 {V(vT0)}, {s.t0}, {V(vT0)}')
A(f'v_add_u32 {V(vT1)}, {LDS_K}, {V(vSlOff)}')
A('s_waitcnt lgkmcnt(0)')
A('s_barrier')
stamp(5)
A(f'ds_read_b32 {V(vPick)}, {V(vMBa)}')
A(f'ds_read_b64 {VR(vXS,2)}, {V(vT0)}')
for k in range(8):
    A(f'ds_read_b32 {V(vKf+k)}, {V(vT1)} offset:{k*KSLOT}')
A(f's_cmp_eq_u32 {s.exg}, 0')
A('s_cbranch_scc1 L_fast')
A('s_waitcnt lgkmcnt(9)')
A(f'v_readfirstlane_b32 {s.t0}, {V(vPick)}')
A(f's_lshr_b32 {s.t0}, {s.t0}, 16')
A(f's_cmp_lg_u32 {s.t0}, 0')
A('s_cbranch_scc1 L_fast')
C('not seen complete yet: look once more')
A(f's_cmp_lg_u32 {s.h}, 0')
A('s_cbranch_scc1 L_rechk')
chk_issue()
A('s_waitcnt vmcnt(0)')
chk_eval('c')
A('s_waitcnt lgkmcnt(0)')
LB('L_rechk')
A('s_barrier')
A(f'ds_read_b32 {V(vPick)}, {V(vMBa)} offset:4')
A('s_waitcnt lgkmcnt(0)')
A(f'v_readfirstlane_b32 {s.t0}, {V(vPick)}')
A(f's_lshr_b32 {s.t0}, {s.t0}, 16')
A(f's_cmp_lg_u32 {s.t0}, 0')
A('s_cbranch_scc1 L_fast')
A(f's_mov_b32 {s.n}, 0')
A(f's_mov_b32 {s.pf}, 4')
LB('L_fast')
A(f's_mov_b32 {s.slot}, {s.slot0}')
A(f's_mov_b32 {s.k0}, 0')
A(f's_and_b32 {s.t0}, {s.pf}, 6')
A(f's_cmp_lg_u32 {s.t0}, 0')
A('s_cbranch_scc1 L_havepf')
A(f's_mov_b32 {s.t1}, {s.n}')
pf_issue()
LB('L_havepf')
C('first pass: 8 LDS partials and up to 16 helper partials')
A(f'v_and_b32 {V(vT0)}, 15, {V(vLane)}')
A(f'v_cmp_gt_u32 vcc, {s.n}, {V(vT0)}')
A(f'v_cmp_gt_u32 {T2P}, 8, {V(vT0)}')
A('s_waitcnt vmcnt(0) lgkmcnt(0)')
A(f'v_cndmask_b32 {V(vYS)}, {V(vNegInf)}, {V(vYS)}, vcc')
A(f'v_cndmask_b32 {V(vYS+1)}, 0, {V(vYS+1)}, vcc')
A(f'v_cndmask_b32 {V(vXS)}, {V(vNegInf)}, {V(vXS)}, {T2P}')
A(f'v_max_f32 {V(vM)}, {V(vYS)}, {V(vXS)}')
for sh in (1, 2, 4, 8):
    A('s_nop 1')
    A(f'v_max_f32_dpp {V(vM)}, {V(vM)}, {V(vM)} row_ror:{sh} row_mask:0xf bank_mask:0xf')
A(f'v_sub_f32 {V(vWA)}, {V(vXS)}, {V(vM)}')
A(f'v_sub_f32 {V(vWB)}, {V(vYS)}, {V(vM)}')
A(f'v_exp_f32 {V(vWA)}, {V(vWA)}')
A(f'v_exp_f32 {V(vWB)}, {V(vWB)}')
A(f'v_mov_b32 {V(vT3)}, 0')
A(f'v_mul_f32 {V(vL)}, {V(vWA)}, {V(vXS+1)}')
A(f'v_fmac_f32 {V(vL)}, {V(vWB)}, {V(vYS+1)}')
for k in range(8):
    A(f'v_fmac_f32_dpp {V(vT3)}, {V(vWA)}, {V(vKf+k)} row_newbcast:{k} row_mask:0xf bank_mask:0xf')
for sh in (1, 2, 4, 8):
    A(f'v_add_f32_dpp {V(vL)}, {V(vL)}, {V(vL)} row_ror:{sh} row_mask:0xf bank_mask:0xf')
    A('s_nop 1')
A(f's_cmp_eq_u32 {s.n}, 0')
A('s_cbranch_scc1 L_merged')
for k in range(16):
    A(f'v_fmac_f32_dpp {V(vT3)}, {V(vWB)}, {V(vY+k)} row_newbcast:{k} row_mask:0xf bank_mask:0xf')
LB('L_more')
A(f's_add_u32 {s.k0}, {s.k0}, 16')
A(f's_cmp_ge_u32 {s.k0}, {s.n}')
A('s_cbranch_scc1 L_merged')
C('more than 16 helper partials: further passes')
A(f's_add_u32 {s.slot}, {s.slot}, 16')
A(f's_sub_u32 {s.t1}, {s.n}, {s.k0}')
pf_issue()
A('s_waitcnt vmcnt(0)')
A(f'v_cndmask_b32 {V(vYS)}, {V(vNegInf)}, {V(vYS)}, vcc')
A(f'v_max_f32 {V(vT0)}, {V(vYS)}, {V(vM)}')
for sh in (1, 2, 4, 8):
    A('s_nop 1')
    A(f'v_max_f32_dpp {V(vT0)}, {V(vT0)}, {V(vT0)} row_ror:{sh} row_mask:0xf bank_mask:0xf')
A(f'v_sub_f32 {V(vWB)}, {V(vYS)}, {V(vT0)}')
A(f'v_sub_f32 {V(vT1)}, {V(vM)}, {V(vT0)}')
A(f'v_exp_f32 {V(vWB)}, {V(vWB)}')
A(f'v_exp_f32 {V(vT1)}, {V(vT1)}')
A(f'v_mov_b32 {V(vM)}, {V(vT0)}')
A(f'v_mul_f32 {V(vT2)}, {V(vWB)}, {V(vYS+1)}')
for sh in (1, 2, 4, 8):
    A('s_nop 1')
    A(f'v_add_f32_dpp {V(vT2)}, {V(vT2)}, {V(vT2)} row_ror:{sh} row_mask:0xf bank_mask:0xf')
A(f'v_fma_f32 {V(vL)}, {V(vL)}, {V(vT1)}, {V(vT2)}')
A(f'v_mul_f32 {V(vT3)}, {V(vT3)}, {V(vT1)}')
for k in range(16):
    A(f'v_fmac_f32_dpp {V(vT3)}, {V(vWB)}, {V(vY+k)} row_newbcast:{k} row_mask:0xf bank_mask:0xf')
A('s_branch L_more')
LB('L_merged')
A(f's_cmp_eq_u32 {s.pf}, 4')
A('s_cbranch_scc1 L_slow')
A(f'v_rcp_f32 {V(vT0)}, {V(vL)}')
A(f's_lshl_b32 {s.t0}, s2, 10')
A(f'v_lshrrev_b32 {V(vT1)}, 1, {V(vSlOff)}')
A(f'v_mul_f32 {V(vT3)}, {V(vT3)}, {V(vT0)}')
A(f'v_cvt_pk_bf16_f32 {V(vT3)}, {V(vT3)}, {V(vT3)}')
A(f'buffer_store_short {V(vT3)}, {V(vT1)}, {srd(sOUT)}, {s.t0} offen')
A('s_branch L_tail')
LB('L_slow')
C('helpers still at work: publish the merged own partial and arrive like a helper')
A(f's_add_u32 {s.t0}, {s.g}, {OWNSLOT}')
A(f's_lshl_b32 {s.t1}, {s.t0}, 14')
A(f's_lshl_b32 {s.t2}, {s.j}, 11')
A(f's_add_u32 {s.t1}, {s.t1}, {s.t2}')
A(f's_lshl_b32 {s.t0}, {s.t0}, 3')
A(f's_add_u32 {s.t0}, {s.t0}, {s.j}')
A(f's_lshl_b32 {s.t0}, {s.t0}, 4')
A(f's_add_u32 {s.t0}, {s.t0}, {STATS}')
A(f's_and_b32 {s.t2}, {s.h}, 4')
A(f's_lshl_b32 {s.t2}, {s.t2}, 1')
A(f's_add_u32 {s.t0}, {s.t0}, {s.t2}')
A(f'v_mov_b32 {V(vT4)}, {V(vM)}')
A(f'v_mov_b32 {V(vT5)}, {V(vL)}')
A(f'v_mov_b32 {V(vT0)}, 0')
A(f'buffer_store_dword {V(vT3)}, {V(vSlOff)}, {srd(sWS)}, {s.t1} offen sc1')
A('s_mov_b64 exec, 1')
A(f'buffer_store_dwordx2 {VR(vT4,2)}, {V(vT0)}, {srd(sWS)}, {s.t0} offen sc1')
A('s_mov_b64 exec, -1')
A('s_waitcnt vmcnt(0)')
A('s_barrier')
A(f's_cmp_lg_u32 {s.h}, 0')
A('s_cbranch_scc1 L_tail')
A(f's_mov_b32 {s.i}, 128')
signal(s.g, s.i, head_is_wave=False)
C('mark this arrival as the owner\'s: bit 16')
A(f's_sub_u32 {s.t0}, {s.seg}, 1')
A(f's_lshl_b64 exec, 1, {s.t0}')
A(f'v_or_b32 {V(vSegB)}, 0x10000, {V(vSegB)}')
A('s_mov_b64 exec, -1')

LB('L_tail')
stamp(6)
A(f's_mov_b32 {s.i}, 0')
A('s_waitcnt vmcnt(0)')
LB('L_chk')
A(f's_cmp_ge_u32 {s.i}, {s.seg}')
A('s_cbranch_scc1 L_fin')
A(f'v_readlane_b32 {s.t3}, {V(vSegB)}, {s.i}')
A(f'v_readlane_b32 {s.t0}, {V(vRet)}, {s.i}')
A(f's_add_u32 {s.i}, {s.i}, 1')
A(f's_and_b32 {s.cb}, {s.t3}, 31')
A(f's_bitcmp1_b32 {s.t3}, 16')
A(f's_cselect_b32 {s.cph}, {s.j}, {s.h}')
A(f'v_readlane_b32 {s.t2}, {V(vEx)}, {s.cb}')
A(f's_and_b32 {s.t1}, {s.cph}, 3')
A(f's_lshl_b32 {s.t1}, {s.t1}, 3')
A(f's_lshr_b32 {s.t0}, {s.t0}, {s.t1}')
A(f's_and_b32 {s.t0}, {s.t0}, 0xff')
A(f's_bfe_u32 {s.t3}, {s.t3}, 0x80008')
A(f's_add_u32 {s.t0}, {s.t0}, {s.t3}')
A(f's_add_u32 {s.t2}, {s.t2}, 128')
A(f's_cmp_lg_u32 {s.t0}, {s.t2}')
A('s_cbranch_scc1 L_chk')
helper_span(s.cb)
cM, cL = vM, vL
A(f'v_mov_b32 {V(cM)}, {V(vNegInf)}')
A(f'v_mov_b32 {V(cL)}, 0')
for e in range(8):
    A(f'v_mov_b32 {V(cAcc+e)}, 0')
A(f's_add_u32 {s.slot}, {s.cb}, {OWNSLOT}')
A(f's_mov_b32 {s.nblk}, 1')
A(f's_mov_b32 {s.k0}, 0')
LB('L_cchunk')
A(f's_lshl_b32 {s.t0}, {s.slot}, 3')
A(f's_add_u32 {s.t0}, {s.t0}, {s.cph}')
A(f's_lshl_b32 {s.t0}, {s.t0}, 4')
A(f's_add_u32 {s.t0}, {s.t0}, {STATS}')
A(f'v_and_b32 {V(vT0)}, 15, {V(vLane)}')
A(f'v_cmp_gt_u32 vcc, {s.nblk}, {V(vT0)}')
A(f'v_mov_b32 {V(vT1)}, {OOB_WS}')
A(f's_lshl_b32 {s.t2}, {s.slot}, 14')
A(f'v_cndmask_b32 {V(vT1)}, {V(vT1)}, {V(vStOff)}, vcc')
A(f's_lshl_b32 {s.t3}, {s.cph}, 11')
A(f's_add_u32 {s.t2}, {s.t2}, {s.t3}')
A(f'buffer_load_dwordx2 {VR(cSt,2)}, {V(vT1)}, {srd(sWS)}, {s.t0} offen sc1')
for k in range(CH):
    A(f's_cmp_gt_u32 {s.nblk}, {k}')
    A(f's_cselect_b32 {s.t3}, {s.t2}, {OOB_WS}')
    A(f'buffer_load_dwordx4 {VR(cD+8*k,4)}, {V(vPoff)}, {srd(sWS)}, {s.t3} offen sc1')
    A(f'buffer_load_dwordx4 {VR(cD+8*k+4,4)}, {V(vPoff)}, {srd(sWS)}, {s.t3} offen offset:16 sc1')
    A(f's_add_u32 {s.t2}, {s.t2}, 16384')
A(f's_waitcnt vmcnt({2*CH})')
A(f'v_cndmask_b32 {V(cSt)}, {V(vNegInf)}, {V(cSt)}, vcc')
A(f'v_max_f32 {V(vT0)}, {V(cSt)}, {V(cM)}')
for sh in (1, 2, 4, 8):
    A('s_nop 1')
    A(f'v_max_f32_dpp {V(vT0)}, {V(vT0)}, {V(vT0)} row_ror:{sh} row_mask:0xf bank_mask:0xf')
A(f'v_sub_f32 {V(cW)}, {V(cSt)}, {V(vT0)}')
A(f'v_sub_f32 {V(vT1)}, {V(cM)}, {V(vT0)}')
A(f'v_exp_f32 {V(cW)}, {V(cW)}')
A(f'v_exp_f32 {V(vT1)}, {V(vT1)}')
A(f'v_mov_b32 {V(cM)}, {V(vT0)}')
A(f'v_mul_f32 {V(vT2)}, {V(cW)}, {V(cSt+1)}')
for sh in (1, 2, 4, 8):
    A('s_nop 1')
    A(f'v_add_f32_dpp {V(vT2)}, {V(vT2)}, {V(vT2)} row_ror:{sh} row_mask:0xf bank_mask:0xf')
A(f'v_fma_f32 {V(cL)}, {V(cL)}, {V(vT1)}, {V(vT2)}')
for e in range(8):
    A(f'v_mul_f32 {V(cAcc+e)}, {V(cAcc+e)}, {V(vT1)}')
for k in range(CH):
    A(f's_waitcnt vmcnt({2*(CH-1-k)})')
    for e in range(8):
        A(f'v_fmac_f32_dpp {V(cAcc+e)}, {V(cW)}, {V(cD+8*k+e)} row_newbcast:{k} row_mask:0xf bank_mask:0xf')
A(f's_add_u32 {s.slot}, {s.slot0}, {s.k0}')
A(f's_sub_u32 {s.nblk}, {s.n}, {s.k0}')
A(f's_min_u32 {s.nblk}, {s.nblk}, {CH}')
A(f's_cmp_lt_u32 {s.k0}, {s.n}')
A(f's_add_u32 {s.k0}, {s.k0}, {CH}')
A(f's_sub_u32 {s.t0}, {s.k0}, {CH}')
A(f's_cmp_lt_u32 {s.t0}, {s.n}')
A('s_cbranch_scc1 L_cchunk')
A(f'v_rcp_f32 {V(vT0)}, {V(cL)}')
A(f's_lshl_b32 {s.t0}, {s.cb}, 13')
A(f's_lshl_b32 {s.t1}, {s.cph}, 10')
A(f's_add_u32 {s.t0}, {s.t0}, {s.t1}')
for e in range(8):
    A(f'v_mul_f32 {V(cAcc+e)}, {V(cAcc+e)}, {V(vT0)}')
for e in range(4):
    A(f'v_cvt_pk_bf16_f32 {V(vS+e)}, {V(cAcc+2*e)}, {V(cAcc+2*e+1)}')
A(f'buffer_store_dwordx4 {VR(vS,4)}, {V(vOutOff)}, {srd(sOUT)}, {s.t0} offen')
A('s_branch L_chk')
LB('L_fin')
if STAMPS:
    A('s_waitcnt vmcnt(0)')
    stamp(7)
    stamp_flush()
LB('L_end')
A('s_endpgm')
L.append('.section .rodata,"a"')
L.append('.p2align 6')
L.append(f'.amdhsa_kernel {KN}')
L.append(f'  .amdhsa_next_free_vgpr {NVGPR}')
L.append('  .amdhsa_next_free_sgpr 102')
L.append(f'  .amdhsa_accum_offset {(NVGPR+3)//4*4}')
L.append('  .amdhsa_group_segment_fixed_size 0')
L.append('  .amdhsa_kernarg_size 64')
L.append('  .amdhsa_user_sgpr_count 2')
L.append('  .amdhsa_user_sgpr_kernarg_segment_ptr 1')
L.append('  .amdhsa_system_sgpr_workgroup_id_x 1')
L.append('.end_amdhsa_kernel')
NC=int(OPT['nocompute'])
if NC:
    a=L.index('L_loop:'); b=L.index('L_own_done:')
    keep=[]
    for x in L[a:b]:
        t=x.strip()
        drop=False
        if NC&1 and (t.startswith('v_mfma')): drop=True
        if NC&2 and (t.startswith('v_perm')): drop=True
        if NC&4 and (t.startswith('ds_read_b128')): drop=True
        if NC&8 and (t.startswith('v_exp') or t.startswith('v_mul_f32') or t.startswith('v_fma') or t.startswith('v_max') or t.startswith('v_add_f32') or t.startswith('v_cvt') or t.startswith('v_permlane') or t.startswith('v_sub_f32')): drop=True
        if not drop: keep.append(x)
    L[a:b]=keep
open(out, 'w').write('\n'.join(x for x in L if x is not None) + '\n')
print('wrote', out, 'lds', LDS_TOTAL, 'sgpr top', idx)
```

```python
import sys, struct
out = sys.argv[1] if len(sys.argv) > 1 else 'standalone__paged_block_table_kv_pagedattention__sampling.s'
OPT = dict(nt='nt', stamps='0', chk='16', forceslow='0', delta='5', trim='1')
for a in sys.argv[2:]:
    k, v = a.split('='); OPT[k] = v
NT = OPT['nt'].replace('+', ' ')
if NT == 'none': NT = ''
STAMPS = int(OPT['stamps'])
TRIM = int(OPT['trim'])
KN = 'standalone__paged_block_table_kv_pagedattention__sampling_kernel'
L = []
def A(s): L.append('    ' + s)
def LB(s): L.append(s + ':')
def C(s): L.append('    ; ' + s)
def f32(x): return '0x%08x' % struct.unpack('<I', struct.pack('<f', x))[0]

NWG = 256
KV_BYTES = 4100 * 65536
WS_BYTES = 1074790400
LDS_K = 16384
KSLOT = 8448
LDS_Q = LDS_K + 8 * KSLOT
LDS_MB = LDS_Q + 8 * 1024
LDS_AR = LDS_MB + 64
REC = 2080
NA = 4
LDS_TOTAL = LDS_AR + NA * 8 * REC
assert LDS_TOTAL <= 163840
STATS = 0x800000
OWNSLOT = 64
OOB_KV = 0x20000000
OOB_WS = 0x60000000
SCALE = 1.4426950408889634 / 16.0
CHK = int(OPT['chk'])
DELTA = int(OPT['delta'])
NPF = 8

sK, sV, sQ, sWS, sDBG, sOUT, sBT, sCL = 4, 8, 12, 16, 20, 24, 28, 32
def srd(b): return f's[{b}:{b+3}]'
KA = 36
names = '''h g j xs xe hc own exg clg nbg cur cb cblk cph c nxt nseq nblk nph segcnt pendb pendcnt seg needq pf chk chkpend
n t0 t1 t2 t3 slot0 rank ldsK ldsQ hoff sel0 sel1 T k0 i slot ex saved mex rkx0'''.split()
R = {}
idx = 52
for nme in names:
    R[nme] = idx; idx += 1
assert idx <= 100, idx
class _S:
    def __getattr__(self, k): return f's{R[k]}'
s = _S()
assert R['t0'] % 2 == 0 and R['t2'] % 2 == 0, (R['t0'], R['t2'])
T2P = f"s[{R['t2']}:{R['t2']+1}]"
s_stamp = 36
vLane, vKVoff, vKrd, vQrd, vQoff, vTok, vPoff, vLane4 = 0, 1, 2, 3, 4, 5, 6, 7
vNb, vCl, vSc, vEx, vEXe, vSp, vSPe, vCls = 8, 9, 10, 11, 12, 13, 14, 15
vSegB, vM, vL, vNegInf, vT0, vT1, vT2, vT3 = 16, 17, 18, 19, 20, 21, 22, 23
vS = 24
vPk = 28
vPick, vMn = 30, 31
vOutOff, vStOff, vT4, vT5 = 32, 33, 34, 35
vRet, vChk, vBT, vMBa = 36, 37, 38, 39
vQ = 40
vKf = 72
vV = 104
vAcc = 136
vY = 168
vYS = 176
vSlOff, vWA, vWB = 178, 179, 180
vXS = 182
vSave = 184
NVGPR = 202
CH = 15
cD = 40; cAcc = 160; cSt = 24; cW = vT4
def V(x): return f'v{x}'
def VR(x, n): return f'v[{x}:{x+n-1}]'
DPPF = 'row_mask:0xf bank_mask:0xf'

def stamp(i):
    if STAMPS:
        A('s_memrealtime s[100:101]')
        A('s_waitcnt lgkmcnt(0)')
        A(f's_mov_b32 s{s_stamp+i}, s100')
def stamp_flush():
    if STAMPS:
        A('s_lshl_b32 s100, s2, 3')
        A(f's_add_u32 s100, s100, {s.h}')
        A('s_lshl_b32 s100, s100, 6')
        A('s_add_u32 s100, s100, 0x2000000')
        for i in range(8):
            A(f'v_mov_b32 v{40+i}, s{s_stamp+i}')
        A('v_mov_b32 v48, 0')
        A('s_mov_b64 exec, 1')
        A(f'buffer_store_dwordx4 v[40:43], v48, {srd(sWS)}, s100 offen')
        A(f'buffer_store_dwordx4 v[44:47], v48, {srd(sWS)}, s100 offen offset:16')
        A('s_mov_b64 exec, -1')

hdr = open('standalone__paged_block_table_kv_pagedattention__sampling.s.ref').read().split('\n')
for line in hdr:
    if line.startswith('; @launch'):
        L.append(f'; @launch grid=({NWG},1,1) block=(512,1,1) lds={LDS_TOTAL}')
        break
    L.append(line)
L.append('.amdgcn_target "amdgcn-amd-amdhsa--gfx950"')
L.append('.text')
L.append(f'.globl {KN}')
L.append('.p2align 8')
L.append(f'.type {KN},@function')
LB(KN)
A(f's_cmp_ge_u32 s2, {NWG}')
A('s_cbranch_scc1 L_end')
if STAMPS:
    A('s_memrealtime s[100:101]')
A(f's_load_dwordx16 s[{KA}:{KA+15}], s[0:1], 0')
A(f'v_lshrrev_b32 {V(vT0)}, 6, v0')
A(f'v_and_b32 {V(vLane)}, 63, v0')
A(f'v_readfirstlane_b32 {s.h}, {V(vT0)}')
C('lane constants')
A(f'v_lshrrev_b32 {V(vT0)}, 5, {V(vLane)}')
A(f'v_and_b32 {V(vT1)}, 31, {V(vLane)}')
A(f'v_lshlrev_b32 {V(vT2)}, 4, {V(vT1)}')
A(f'v_lshl_add_u32 {V(vKVoff)}, {V(vT0)}, 15, {V(vT2)}')
A(f'v_lshl_add_u32 {V(vOutOff)}, {V(vT0)}, 9, {V(vT2)}')
A(f'v_lshl_add_u32 {V(vPoff)}, {V(vT0)}, 10, {V(vT2)}')
A(f'v_and_b32 {V(vT2)}, 15, {V(vLane)}')
A(f'v_lshlrev_b32 {V(vT2)}, 10, {V(vT2)}')
A(f'v_lshl_add_u32 {V(vStOff)}, {V(vT0)}, 3, {V(vT2)}')
A(f'v_lshlrev_b32 {V(vQoff)}, 4, {V(vLane)}')
A(f'v_lshlrev_b32 {V(vLane4)}, 2, {V(vLane)}')
A(f'v_lshrrev_b32 {V(vT0)}, 4, {V(vLane)}')
A(f'v_lshlrev_b32 {V(vTok)}, 2, {V(vT0)}')
A(f'v_lshlrev_b32 {V(vT2)}, 4, {V(vT0)}')
A(f'v_bfe_u32 {V(vT1)}, {V(vLane)}, 3, 1')
A(f'v_lshl_add_u32 {V(vT3)}, {V(vT1)}, 9, {V(vT2)}')
A(f'v_and_b32 {V(vT1)}, 7, {V(vLane)}')
A(f'v_mul_u32_u24 {V(vT1)}, 1056, {V(vT1)}')
A(f's_mul_i32 {s.ldsK}, {s.h}, {KSLOT}')
A(f's_add_u32 {s.ldsK}, {s.ldsK}, {LDS_K}')
A(f's_lshl_b32 {s.ldsQ}, {s.h}, 10')
A(f's_add_u32 {s.ldsQ}, {s.ldsQ}, {LDS_Q}')
A(f'v_add3_u32 {V(vKrd)}, {V(vT3)}, {V(vT1)}, {s.ldsK}')
A(f'v_and_b32 {V(vT1)}, 1, {V(vLane)}')
A(f'v_lshl_add_u32 {V(vT2)}, {V(vT1)}, 9, {V(vT2)}')
A(f'v_add_u32 {V(vQrd)}, {s.ldsQ}, {V(vT2)}')
A(f'v_mov_b32 {V(vNegInf)}, 0xff800000')
A(f's_mov_b32 {s.sel0}, 0x05040100')
A(f's_mov_b32 {s.sel1}, 0x07060302')
A(f's_bfe_u32 {s.j}, s2, 0x30001')
A(f's_lshl_b32 {s.hoff}, {s.j}, 9')
for z in ('seg', 'pendcnt', 'chkpend', 'segcnt', 'ex', 'saved'):
    A(f's_mov_b32 {getattr(s, z)}, 0')
C('LDS words: 0 pick counter + flag, 1 re-check flag, 4..7 deposit areas (generation tag in bits 16+)')
A(f'v_mov_b32 {V(vMBa)}, {LDS_MB}')
A(f'v_and_b32 {V(vT3)}, 124, {V(vLane4)}')
A(f'v_add_u32 {V(vT0)}, -4, {V(vLane)}')
A(f'v_max_i32 {V(vT0)}, 0, {V(vT0)}')
A(f'v_lshlrev_b32 {V(vT0)}, 16, {V(vT0)}')
A(f'v_add_u32 {V(vT1)}, {LDS_MB}, {V(vLane4)}')
A(f's_lshl_b32 {s.t0}, {s.h}, 11')
A('s_mov_b64 exec, 0xff')
A(f'ds_write_b32 {V(vT1)}, {V(vT0)}')
A('s_mov_b64 exec, -1')
A('s_waitcnt lgkmcnt(0)')
def mksrd(b, ka, nbytes):
    A(f's_mov_b32 s{b}, s{KA+ka}')
    A(f's_and_b32 s{b+1}, s{KA+ka+1}, 0xffff')
    A(f's_mov_b32 s{b+2}, {nbytes}')
    A(f's_mov_b32 s{b+3}, 0x20000')
mksrd(sCL, 8, 128)
mksrd(sBT, 6, 16384)
A(f'buffer_load_dword {V(vCl)}, {V(vT3)}, {srd(sCL)}, 0 offen')
A(f's_mov_b32 m0, {s.t0}')
mksrd(sK, 2, KV_BYTES)
A(f'buffer_load_dwordx4 {V(vQoff)}, {srd(sBT)}, {s.t0} offen lds')
A(f'buffer_load_dwordx4 {V(vQoff)}, {srd(sBT)}, {s.t0} offen offset:1024 lds')
mksrd(sV, 4, KV_BYTES)
mksrd(sQ, 0, 32 * 16 * 512)
mksrd(sWS, 14, WS_BYTES)
mksrd(sDBG, 12, 256)
mksrd(sOUT, 10, 32 * 16 * 512)
if STAMPS:
    A(f's_mov_b32 s{s_stamp}, s100')
stamp(1)
A(f'v_mov_b32 {V(vT1)}, 2048')
A(f'v_mov_b32 {V(vT2)}, {f32(SCALE)}')
A(f'v_and_b32 {V(vT4)}, 31, {V(vLane)}')
A(f'v_lshlrev_b32 {V(vT5)}, {V(vT4)}, 1')
A(f'v_add_u32 {V(vT4)}, -1, {V(vT5)}')
A(f's_mov_b32 {s.t1}, 0')
A('s_waitcnt vmcnt(2)')
C('effective context length, blocks per sequence, scale')
A(f'v_add_u32 {V(vT0)}, -1, {V(vCl)}')
A(f'v_cmp_gt_u32 vcc, {V(vT1)}, {V(vT0)}')
A(f'v_cmp_ge_i32 {T2P}, 0, {V(vCl)}')
A('s_nop 0')
A(f'v_cndmask_b32 {V(vCl)}, {V(vT1)}, {V(vCl)}, vcc')
A(f'v_cndmask_b32 {V(vSc)}, {V(vT2)}, 0, {T2P}')
A(f'v_add_u32 {V(vNb)}, 15, {V(vCl)}')
A(f'v_lshrrev_b32 {V(vNb)}, 4, {V(vNb)}')
A(f'v_mov_b32 {V(vT0)}, {V(vNb)}')
C('binary search for the median length (interleaved with the DPP scan of the block counts):')
C('the 16 longest sequences go to even-numbered workgroups (larger budget), the others to odd ones')
steps = [f'v_add_u32_dpp {V(vT0)}, {V(vT0)}, {V(vT0)} row_shr:{sh} {DPPF} bound_ctrl:0' for sh in (1, 2, 4, 8)]
steps.append(f'v_add_u32_dpp {V(vT0)}, {V(vT0)}, {V(vT0)} row_bcast:15 row_mask:0xa bank_mask:0xf')
for n, bit in enumerate((128, 64, 32, 16, 8, 4, 2, 1)):
    A(f's_add_u32 {s.t2}, {s.t1}, {bit-1}')
    A(f'v_cmp_lt_u32 vcc, {s.t2}, {V(vNb)}')
    if 1 <= n <= len(steps): A(steps[n-1])
    A(f's_bcnt1_i32_b32 {s.t3}, vcc_lo')
    A(f's_add_u32 {s.t2}, {s.t2}, 1')
    A(f's_cmp_gt_u32 {s.t3}, 16')
    A(f's_cselect_b32 {s.t1}, {s.t2}, {s.t1}')
A(f'v_cmp_lt_u32 vcc, {s.t1}, {V(vNb)}')
A(f'v_cmp_eq_u32 {T2P}, {s.t1}, {V(vNb)}')
A(f'v_readlane_b32 {s.T}, {V(vT0)}, 31')
A(f's_bcnt1_i32_b32 {s.t0}, vcc_lo')
A(f's_mov_b32 {s.t1}, vcc_lo')
A(f's_sub_u32 {s.t0}, 16, {s.t0}')
A(f'v_and_b32 {V(vT3)}, {s.t2}, {V(vT4)}')
A(f'v_bcnt_u32_b32 {V(vT3)}, {V(vT3)}, 0')
A(f'v_cmp_gt_u32 vcc, {s.t0}, {V(vT3)}')
A(f's_and_b32 {s.t2}, {s.t2}, vcc_lo')
A(f's_or_b32 {s.k0}, {s.t1}, {s.t2}')
A(f's_not_b32 {s.t2}, {s.k0}')
A('s_bitcmp1_b32 s2, 0')
A(f's_cselect_b32 {s.t1}, {s.t2}, {s.k0}')
A(f'v_and_b32 {V(vT3)}, {s.t1}, {V(vT4)}')
A(f'v_bcnt_u32_b32 {V(vT3)}, {V(vT3)}, 0')
A(f's_lshr_b32 {s.t2}, s2, 4')
A(f'v_cmp_eq_u32 vcc, {s.t2}, {V(vT3)}')
A(f's_and_b32 {s.t1}, {s.t1}, vcc_lo')
A(f's_ff1_i32_b32 {s.g}, {s.t1}')
A(f'v_readlane_b32 {s.nbg}, {V(vNb)}, {s.g}')
A(f'v_readlane_b32 {s.clg}, {V(vCl)}, {s.g}')
C('first block of this wave: block nb-1-wave of the own sequence (dropped later if it is not an own block)')
A(f's_mov_b32 {s.nseq}, {s.g}')
A(f's_sub_u32 {s.nblk}, {s.nbg}, {s.h}')
A(f's_sub_u32 {s.nblk}, {s.nblk}, 1')
A(f's_cmp_lt_u32 {s.h}, {s.nbg}')
A(f's_cselect_b32 {s.nph}, 0, 2')
A(f's_cselect_b32 {s.nblk}, {s.nblk}, 0')

def bt_addr():
    A(f's_lshl_b32 {s.t0}, {s.nseq}, 7')
    A(f's_add_u32 {s.t0}, {s.t0}, {s.nblk}')
    A(f's_lshl_b32 {s.t0}, {s.t0}, 2')
    A(f'v_mov_b32 {V(vT0)}, {s.t0}')
lab = [0]
def decode_pick():
    lab[0] += 1; n = lab[0]
    A(f'v_readfirstlane_b32 {s.t1}, {V(vPick)}')
    A(f's_and_b32 {s.t0}, {s.t1}, 0xffff')
    A(f's_lshr_b32 {s.t1}, {s.t1}, 16')
    A(f's_or_b32 {s.pf}, {s.pf}, {s.t1}')
    A(f's_cmp_eq_u32 {s.t0}, {s.chk}')
    A(f's_cselect_b32 {s.chkpend}, 2, {s.chkpend}')
    A(f's_cmp_ge_u32 {s.t0}, {s.hc}')
    A(f's_cbranch_scc1 L_dn_own{n}')
    A(f's_add_u32 {s.t0}, {s.t0}, {s.xs}')
    A(f'v_cmp_ge_u32 vcc, {s.t0}, {V(vEXe)}')
    A(f's_bcnt1_i32_b32 {s.nseq}, vcc_lo')
    A(f'v_readlane_b32 {s.t2}, {V(vEXe)}, {s.nseq}')
    A(f'v_readlane_b32 {s.t1}, {V(vEx)}, {s.nseq}')
    A(f's_sub_u32 {s.t2}, {s.t2}, {s.t1}')
    A(f's_sub_u32 {s.nblk}, {s.t0}, {s.t2}')
    A(f's_mov_b32 {s.nph}, 1')
    A(f's_branch L_dn_bt{n}')
    LB(f'L_dn_own{n}')
    A(f's_sub_u32 {s.t0}, {s.t0}, {s.hc}')
    A(f's_add_u32 {s.t0}, {s.t0}, 8')
    A(f's_mov_b32 {s.nseq}, {s.g}')
    A(f's_sub_u32 {s.nblk}, {s.nbg}, {s.t0}')
    A(f's_sub_u32 {s.nblk}, {s.nblk}, 1')
    A(f's_cmp_lt_u32 {s.t0}, {s.own}')
    A(f's_cselect_b32 {s.nph}, 0, 2')
    A(f's_cselect_b32 {s.nblk}, {s.nblk}, 0')
    LB(f'L_dn_bt{n}')
    bt_addr()
def decode_fin():
    A(f'v_readfirstlane_b32 {s.nxt}, {V(vBT)}')
    A(f's_lshl_b32 {s.nxt}, {s.nxt}, 16')
    A(f's_add_u32 {s.nxt}, {s.nxt}, {s.hoff}')
    A(f's_cmp_eq_u32 {s.nph}, 2')
    A(f's_cselect_b32 {s.nxt}, {OOB_KV}, {s.nxt}')
def q_dma():
    A(f's_lshl_b32 {s.t1}, {s.hoff}, 1')
    A(f's_lshl_b32 {s.t2}, {s.nseq}, 13')
    A(f's_mov_b32 m0, {s.ldsQ}')
    A(f's_add_u32 {s.t1}, {s.t1}, {s.t2}')
    A(f'buffer_load_dwordx4 {V(vQoff)}, {srd(sQ)}, {s.t1} offen lds')
def k_dma(j):
    r = []
    if j == 0:
        r.append(f's_mov_b32 m0, {s.ldsK}')
        r.append(f's_mov_b32 {s.t3}, {s.nxt}')
    else:
        r.append('s_add_u32 m0, m0, 1056')
        r.append(f's_add_u32 {s.t3}, {s.t3}, 4096')
    r.append(f'buffer_load_dwordx4 {V(vKVoff)}, {srd(sK)}, {s.t3} offen {NT} lds')
    return r
def v_load(j):
    r = []
    if j == 0:
        r.append(f'buffer_load_dwordx4 {VR(vV, 4)}, {V(vKVoff)}, {srd(sV)}, {s.cur} offen {NT}')
    else:
        r.append(f's_add_u32 {s.t3}, {s.cur}, {4096*j}')
        r.append(f'buffer_load_dwordx4 {VR(vV+4*j, 4)}, {V(vKVoff)}, {srd(sV)}, {s.t3} offen {NT}')
    return r
def pick_issue():
    A(f'v_mov_b32 {V(vT0)}, 1')
    A('s_mov_b64 exec, 1')
    A(f'ds_add_rtn_u32 {V(vPick)}, {V(vMBa)}, {V(vT0)}')
    A('s_mov_b64 exec, -1')

bt_addr()
A('s_waitcnt vmcnt(0)')
A('s_barrier')
stamp(2)
A(f'ds_read_b32 {V(vBT)}, {V(vT0)}')
q_dma()
if TRIM:
    C('wave 0 holds the last block: rows past the context are not fetched')
    A(f's_lshl_b32 {s.t0}, {s.nblk}, 4')
    A(f's_sub_u32 {s.t0}, {s.clg}, {s.t0}')
    A(f's_lshl_b32 {s.t0}, {s.t0}, 12')
A('s_waitcnt lgkmcnt(0)')
decode_fin()
if TRIM:
    A(f's_sub_u32 {s.t1}, {s.nxt}, {s.hoff}')
    A(f's_add_u32 {s.t1}, {s.t1}, {s.t0}')
    A(f's_cmp_eq_u32 {s.h}, 0')
    A(f's_cselect_b32 s{sK+2}, {s.t1}, {KV_BYTES}')
    A(f's_cselect_b32 s{sV+2}, {s.t1}, {KV_BYTES}')
for j in range(8):
    for x in k_dma(j): A(x)
if TRIM:
    A(f's_mov_b32 s{sK+2}, {KV_BYTES}')

C('off the critical path: budgets, excess and spare lists')
A(f'v_and_b32 {V(vT3)}, {s.k0}, {V(vT5)}')
A(f'v_cmp_ne_u32 vcc, 0, {V(vT3)}')
A(f's_add_u32 {s.t0}, {s.T}, 31')
A(f's_lshr_b32 {s.t0}, {s.t0}, 5')
A(f's_sub_u32 {s.t1}, {s.t0}, 1')
A(f's_min_u32 {s.t1}, {s.t1}, {DELTA}')
A(f's_add_u32 {s.t2}, {s.t0}, {s.t1}')
A(f's_sub_u32 {s.t1}, {s.t0}, {s.t1}')
A(f'v_mov_b32 {V(vT2)}, {s.t1}')
A(f'v_mov_b32 {V(vT3)}, {s.t2}')
A(f'v_cndmask_b32 {V(vT2)}, {V(vT2)}, {V(vT3)}, vcc')
A(f'v_min_u32 {V(vT1)}, {V(vT2)}, {V(vNb)}')
A(f'v_sub_u32 {V(vEx)}, {V(vNb)}, {V(vT1)}')
A(f'v_sub_u32 {V(vSp)}, {V(vT2)}, {V(vT1)}')
A(f'v_lshl_or_b32 {V(vT0)}, {V(vSp)}, 16, {V(vEx)}')
A(f'v_cmp_ne_u32 vcc, 0, {V(vEx)}')
A(f'v_cmp_ne_u32 {T2P}, 0, {V(vSp)}')
for st in steps:
    A('s_nop 1')
    A(st)
A(f's_mov_b32 {s.mex}, vcc_lo')
A(f'v_mov_b32 {V(vCls)}, {s.t2}')
A(f'v_readlane_b32 {s.own}, {V(vT1)}, {s.g}')
A(f'v_readlane_b32 {s.t1}, {V(vSp)}, {s.g}')
A(f'v_and_b32 {V(vEXe)}, 0xffff, {V(vT0)}')
A(f'v_lshrrev_b32 {V(vSPe)}, 16, {V(vT0)}')
A(f's_bfm_b32 {s.t0}, {s.g}, 0')
A(f's_and_b32 {s.t0}, {s.t0}, {s.t2}')
A(f's_bcnt1_i32_b32 {s.rank}, {s.t0}')
A(f'v_readlane_b32 {s.t3}, {V(vEXe)}, 31')
A(f'v_readlane_b32 {s.xe}, {V(vSPe)}, {s.g}')
A(f'v_readlane_b32 {s.exg}, {V(vEx)}, {s.g}')
A(f's_sub_u32 {s.xs}, {s.xe}, {s.t1}')
A(f's_min_u32 {s.xs}, {s.xs}, {s.t3}')
A(f's_min_u32 {s.xe}, {s.xe}, {s.t3}')
A(f's_sub_u32 {s.hc}, {s.xe}, {s.xs}')
A(f'v_cmp_ge_u32 vcc, {s.xs}, {V(vEXe)}')
A(f's_and_b32 {s.t0}, vcc_lo, {s.mex}')
A(f's_bcnt1_i32_b32 {s.rkx0}, {s.t0}')
def rank_of(xs, dst):
    A(f'v_cmp_ge_u32 vcc, {xs}, {V(vSPe)}')
    A(f'v_readfirstlane_b32 {s.t1}, {V(vCls)}')
    A(f's_and_b32 {s.t1}, {s.t1}, vcc_lo')
    A(f's_bcnt1_i32_b32 {dst}, {s.t1}')
def helper_span(sb):
    A(f'v_readlane_b32 {s.t0}, {V(vEXe)}, {sb}')
    A(f'v_readlane_b32 {s.k0}, {V(vEx)}, {sb}')
    A(f's_sub_u32 {s.k0}, {s.t0}, {s.k0}')
    A(f's_sub_u32 {s.t0}, {s.t0}, 1')
    rank_of(s.t0, s.n)
    rank_of(s.k0, s.slot0)
    A(f's_sub_u32 {s.n}, {s.n}, {s.slot0}')
    A(f's_add_u32 {s.n}, {s.n}, 1')
    A(f's_add_u32 {s.slot0}, {s.slot0}, {sb}')
helper_span(s.g)
A(f's_sub_u32 {s.chk}, {s.own}, {8 + CHK}')
A(f's_max_i32 {s.chk}, {s.chk}, 0')
A(f's_add_u32 {s.chk}, {s.chk}, {s.hc}')
A(f's_cmp_eq_u32 {s.exg}, 0')
A(f's_cselect_b32 {s.n}, 0, {s.n}')
A(f's_cselect_b32 {s.pf}, 3, 0')
A(f's_cselect_b32 {s.chk}, 0xffff, {s.chk}')
A(f's_lshl_b32 {s.t0}, {s.h}, 8')
A(f'v_add_u32 {V(vSlOff)}, {s.t0}, {V(vLane4)}')
for r in range(32):
    A(f'v_mov_b32 {V(vAcc+r)}, 0')
A(f'v_mov_b32 {V(vM)}, {f32(-1e30)}')
A(f'v_mov_b32 {V(vL)}, 0')
A(f'v_mov_b32 {V(vRet)}, 0')
A(f'v_mov_b32 {V(vSegB)}, 0')
stamp(3)
A(f's_cmp_lt_u32 {s.h}, {s.own}')
A('s_cbranch_scc1 L_newseg')
C('no own first block for this wave: take one from the list')
pick_issue()
A('s_waitcnt vmcnt(0) lgkmcnt(0)')
decode_pick()
A(f'ds_read_b32 {V(vBT)}, {V(vT0)}')
q_dma()
A('s_waitcnt lgkmcnt(0)')
decode_fin()
for j in range(8):
    for x in k_dma(j): A(x)
A(f's_cmp_eq_u32 {s.nph}, 2')
A('s_cbranch_scc1 L_own_done')
A('s_branch L_newseg')

def merge_halves():
    A(f'v_mov_b32 {V(vT0)}, {V(vL)}')
    A(f'v_mov_b32 {V(vT1)}, {V(vM)}')
    A(f'v_mov_b32 {V(vT2)}, {V(vM)}')
    A('s_nop 0')
    A(f'v_permlane16_swap_b32 {V(vL)}, {V(vT0)}')
    A(f'v_permlane32_swap_b32 {V(vT1)}, {V(vT2)}')
    A(f'v_add_f32 {V(vL)}, {V(vL)}, {V(vT0)}')
    A(f'v_max_f32 {V(vMn)}, {V(vT1)}, {V(vT2)}')
    A(f'v_sub_f32 {V(vT2)}, {V(vM)}, {V(vMn)}')
    A(f'v_mul_f32 {V(vT2)}, {s.c}, {V(vT2)}')
    A(f'v_exp_f32 {V(vT2)}, {V(vT2)}')
    A(f'v_mul_f32 {V(vT4)}, {s.c}, {V(vMn)}')
    A('s_nop 0')
    A(f'v_mul_f32 {V(vL)}, {V(vL)}, {V(vT2)}')
    for e in range(8):
        A(f'v_mul_f32_dpp {V(vAcc+4*e)}, {V(vT2)}, {V(vAcc+4*e)} quad_perm:[0,0,2,2] {DPPF}')
        A(f'v_mul_f32_dpp {V(vAcc+4*e+1)}, {V(vT2)}, {V(vAcc+4*e+1)} quad_perm:[1,1,3,3] {DPPF}')
    A(f'v_mov_b32 {V(vT0)}, {V(vL)}')
    A('s_nop 1')
    A(f'v_permlane32_swap_b32 {V(vL)}, {V(vT0)}')
    for e in range(8):
        A(f'v_permlane32_swap_b32 {V(vAcc+4*e)}, {V(vAcc+4*e+1)}')
    A(f'v_add_f32 {V(vT5)}, {V(vL)}, {V(vT0)}')
    for e in range(8):
        A(f'v_add_f32 {V(vKf+e)}, {V(vAcc+4*e)}, {V(vAcc+4*e+1)}')
    A(f'v_lshlrev_b32 {V(vT0)}, 3, {V(vLane)}')
def lds_record(sbase):
    A(f'v_add_u32 {V(vT1)}, {sbase}, {V(vPoff)}')
    A(f'v_add_u32 {V(vT0)}, {sbase}, {V(vT0)}')
    A(f'ds_write_b128 {V(vT1)}, {VR(vKf,4)}')
    A(f'ds_write_b128 {V(vT1)}, {VR(vKf+4,4)} offset:512')
    A('s_mov_b64 exec, 3')
    A(f'ds_write_b64 {V(vT0)}, {VR(vT4,2)} offset:2048')
    A('s_mov_b64 exec, -1')
def reset_state():
    for e in range(8):
        A(f'v_mov_b32 {V(vAcc+4*e)}, 0')
        A(f'v_mov_b32 {V(vAcc+4*e+1)}, 0')
    A(f'v_mov_b32 {V(vM)}, {f32(-1e30)}')
    A(f'v_mov_b32 {V(vL)}, 0')
def signal(sb, scnt):
    A(f's_lshl_b32 {s.t0}, {sb}, 3')
    A(f's_and_b32 {s.t1}, {s.j}, 4')
    A(f's_add_u32 {s.t0}, {s.t0}, {s.t1}')
    A(f's_and_b32 {s.t1}, {s.j}, 3')
    A(f's_lshl_b32 {s.t1}, {s.t1}, 3')
    A(f's_lshl_b32 {s.t1}, {scnt}, {s.t1}')
    A(f's_lshl_b32 {s.t2}, {scnt}, 8')
    A(f's_or_b32 {s.t2}, {s.t2}, {sb}')
    A(f'v_mov_b32 {V(vT2)}, {s.t0}')
    A(f's_lshl_b64 exec, 1, {s.seg}')
    A(f'v_mov_b32 {V(vSegB)}, {s.t2}')
    A(f'v_mov_b32 {V(vRet)}, {s.t1}')
    A(f'buffer_atomic_add {V(vRet)}, {V(vT2)}, {srd(sDBG)}, 0 offen sc0')
    A('s_mov_b64 exec, -1')
    A(f's_add_u32 {s.seg}, {s.seg}, 1')
def chk_issue():
    A(f's_lshl_b32 {s.t0}, {s.g}, 3')
    A(f's_and_b32 {s.t1}, {s.j}, 4')
    A(f's_add_u32 {s.t0}, {s.t0}, {s.t1}')
    A(f'v_mov_b32 {V(vT2)}, {s.t0}')
    A(f'buffer_load_dword {V(vChk)}, {V(vT2)}, {srd(sDBG)}, 0 offen sc1')
def chk_eval(tag):
    A(f'v_readfirstlane_b32 {s.t0}, {V(vChk)}')
    A(f's_and_b32 {s.t1}, {s.j}, 3')
    A(f's_lshl_b32 {s.t1}, {s.t1}, 3')
    A(f's_lshr_b32 {s.t0}, {s.t0}, {s.t1}')
    A(f's_and_b32 {s.t0}, {s.t0}, 0xff')
    if OPT['forceslow'] == '1':
        A(f's_add_u32 {s.t0}, {s.t0}, 1000')
    A(f's_cmp_lg_u32 {s.t0}, {s.exg}')
    A(f's_cbranch_scc1 L_chkno{tag}')
    A(f'v_mov_b32 {V(vT2)}, 0x10000')
    A(f'ds_or_b32 {V(vMBa)}, {V(vT2)}' + (' offset:4' if tag == 'c' else ''))
    LB(f'L_chkno{tag}')
def rec_addr(sslot, ddata, dstat):
    A(f's_lshl_b32 {dstat}, {sslot}, 3')
    A(f's_add_u32 {dstat}, {dstat}, {s.j}')
    A(f's_lshl_b32 {ddata}, {dstat}, 11')
    A(f's_lshl_b32 {dstat}, {dstat}, 7')
    A(f's_add_u32 {dstat}, {dstat}, {STATS}')
def pf_issue():
    rec_addr(s.slot, s.t2, s.t0)
    A(f's_and_b32 {s.t3}, {s.h}, 4')
    A(f's_lshl_b32 {s.t3}, {s.t3}, 1')
    A(f's_add_u32 {s.t0}, {s.t0}, {s.t3}')
    A(f's_min_u32 {s.t1}, {s.t1}, {NPF}')
    A(f'v_and_b32 {V(vT0)}, 15, {V(vLane)}')
    A(f'v_cmp_gt_u32 vcc, {s.t1}, {V(vT0)}')
    A(f'v_lshlrev_b32 {V(vT0)}, 10, {V(vT0)}')
    A(f'v_mov_b32 {V(vT1)}, {OOB_WS}')
    A('s_nop 0')
    A(f'v_cndmask_b32 {V(vT1)}, {V(vT1)}, {V(vT0)}, vcc')
    A(f'buffer_load_dwordx2 {VR(vYS,2)}, {V(vT1)}, {srd(sWS)}, {s.t0} offen sc1')
    for k in range(NPF):
        A(f's_cmp_gt_u32 {s.t1}, {k}')
        A(f's_cselect_b32 {s.t3}, {s.t2}, {OOB_WS}')
        A(f'buffer_load_dword {V(vY+k)}, {V(vSlOff)}, {srd(sWS)}, {s.t3} offen sc1')
        A(f's_add_u32 {s.t2}, {s.t2}, 16384')
def row_allreduce(op, v):
    for sh in (1, 2, 4, 8):
        A('s_nop 1')
        A(f'v_{op}_f32_dpp {V(v)}, {V(v)}, {V(v)} row_ror:{sh} {DPPF}')

LB('L_deposit')
merge_halves()
A(f's_bfm_b32 {s.t0}, {s.cb}, 0')
A(f's_and_b32 {s.t0}, {s.t0}, {s.mex}')
A(f's_bcnt1_i32_b32 {s.t0}, {s.t0}')
A(f's_sub_u32 {s.k0}, {s.t0}, {s.rkx0}')
A(f's_and_b32 {s.t0}, {s.k0}, {NA-1}')
A(f's_lshl_b32 {s.t1}, {s.t0}, 2')
A(f's_add_u32 {s.t1}, {s.t1}, {LDS_MB + 16}')
A(f'v_mov_b32 {V(vT3)}, {s.t1}')
A(f's_mul_i32 {s.slot}, {s.t0}, {8*REC}')
A(f's_add_u32 {s.slot}, {s.slot}, {LDS_AR}')
LB('L_gen')
A(f'ds_read_b32 {V(vT2)}, {V(vT3)}')
A('s_waitcnt lgkmcnt(0)')
A(f'v_readfirstlane_b32 {s.t0}, {V(vT2)}')
A(f's_lshr_b32 {s.t0}, {s.t0}, 16')
A(f's_cmp_lg_u32 {s.t0}, {s.k0}')
A('s_cbranch_scc1 L_gen')
A(f's_mul_i32 {s.t0}, {s.h}, {REC}')
A(f's_add_u32 {s.t0}, {s.t0}, {s.slot}')
lds_record(s.t0)
A(f's_lshl_b32 {s.t0}, 0x100, {s.h}')
A(f's_add_u32 {s.t0}, {s.t0}, {s.segcnt}')
A(f'v_mov_b32 {V(vT2)}, {s.t0}')
A(f'v_readlane_b32 {s.t1}, {V(vEXe)}, {s.cb}')
A(f'v_readlane_b32 {s.t2}, {V(vEx)}, {s.cb}')
A('s_waitcnt lgkmcnt(0)')
A('s_mov_b64 exec, 1')
A(f'ds_add_rtn_u32 {V(vT1)}, {V(vT3)}, {V(vT2)}')
A('s_mov_b64 exec, -1')
A(f's_sub_u32 {s.t2}, {s.t1}, {s.t2}')
A(f's_max_u32 {s.t2}, {s.t2}, {s.xs}')
A(f's_min_u32 {s.t1}, {s.t1}, {s.xe}')
A(f's_sub_u32 {s.t1}, {s.t1}, {s.t2}')
A(f's_mov_b32 {s.segcnt}, 0')
A('s_waitcnt lgkmcnt(0)')
A(f'v_readfirstlane_b32 {s.t2}, {V(vT1)}')
A(f's_add_u32 {s.t0}, {s.t0}, {s.t2}')
A(f's_and_b32 {s.t2}, {s.t0}, 0xff')
A(f's_cmp_lg_u32 {s.t2}, {s.t1}')
A('s_cbranch_scc1 L_deposited')
C('merge the deposited records of the waves in mask t0[15:8]')
A(f's_mov_b32 {s.pendcnt}, {s.t1}')
A(f's_mov_b32 {s.pendb}, {s.cb}')
A(f's_bfe_u32 {s.t0}, {s.t0}, 0x80008')
A(f'v_and_b32 {V(vT0)}, 7, {V(vLane)}')
A(f'v_mul_u32_u24 {V(vT0)}, {REC}, {V(vT0)}')
A(f'v_lshrrev_b32 {V(vT1)}, 5, {V(vLane)}')
A(f'v_lshl_add_u32 {V(vT0)}, {V(vT1)}, 3, {V(vT0)}')
A(f'v_add_u32 {V(vT0)}, {s.slot}, {V(vT0)}')
A(f'v_add_u32 {V(vT1)}, {s.slot}, {V(vPoff)}')
A(f'ds_read_b64 {VR(vXS,2)}, {V(vT0)} offset:2048')
for u in range(8):
    A(f'ds_read_b128 {VR(vKf+8*u,4)}, {V(vT1)} offset:{u*REC}')
    A(f'ds_read_b128 {VR(vKf+8*u+4,4)}, {V(vT1)} offset:{u*REC+512}')
A(f'v_and_b32 {V(vT0)}, 15, {V(vLane)}')
A(f'v_lshrrev_b32 {V(vT0)}, {V(vT0)}, {s.t0}')
A(f'v_and_b32 {V(vT0)}, 1, {V(vT0)}')
A(f'v_cmp_ne_u32 vcc, 0, {V(vT0)}')
A(f's_add_u32 {s.t1}, {s.k0}, {NA}')
A(f's_lshl_b32 {s.t1}, {s.t1}, 16')
A(f'v_mov_b32 {V(vT2)}, {s.t1}')
A('s_waitcnt lgkmcnt(0)')
A(f'ds_write_b32 {V(vT3)}, {V(vT2)}')
A(f'v_cndmask_b32 {V(vXS)}, {V(vNegInf)}, {V(vXS)}, vcc')
A(f'v_cndmask_b32 {V(vXS+1)}, 0, {V(vXS+1)}, vcc')
A(f'v_mov_b32 {V(vS)}, {V(vXS)}')
row_allreduce('max', vS)
A(f'v_sub_f32 {V(vWA)}, {V(vXS)}, {V(vS)}')
A(f'v_exp_f32 {V(vWA)}, {V(vWA)}')
for e in range(8):
    A(f'v_mov_b32 {V(vAcc+e)}, 0')
A(f'v_mul_f32 {V(vS+1)}, {V(vWA)}, {V(vXS+1)}')
row_allreduce('add', vS+1)
for u in range(8):
    A(f's_bitcmp0_b32 {s.t0}, {u}')
    A(f's_cbranch_scc1 L_mskip{u}')
    for e in range(8):
        A(f'v_fmac_f32_dpp {V(vAcc+e)}, {V(vWA)}, {V(vKf+8*u+e)} row_newbcast:{u} {DPPF}')
    LB(f'L_mskip{u}')
A(f'v_readlane_b32 {s.t2}, {V(vS)}, 32')
A(f'v_readlane_b32 {s.t3}, {V(vS+1)}, 32')
A(f's_add_u32 {s.slot}, {s.rank}, {s.cb}')
rec_addr(s.slot, s.t1, s.t0)
A(f'v_mov_b32 {V(vS+2)}, {s.t2}')
A(f'v_mov_b32 {V(vS+3)}, {s.t3}')
A(f'buffer_store_dwordx4 {VR(vAcc,4)}, {V(vPoff)}, {srd(sWS)}, {s.t1} offen sc1')
A(f'buffer_store_dwordx4 {VR(vAcc+4,4)}, {V(vPoff)}, {srd(sWS)}, {s.t1} offen offset:512 sc1')
A('s_mov_b64 exec, 0xff')
A(f'buffer_store_dwordx4 {VR(vS,4)}, {V(vQoff)}, {srd(sWS)}, {s.t0} offen sc1')
A('s_mov_b64 exec, -1')
A(f's_add_u32 {s.ex}, {s.ex}, 3')
A('s_nop 0')
LB('L_deposited')
A(f's_cmp_eq_u32 {s.nph}, 1')
A('s_cbranch_scc1 L_fresh')
A(f's_cmp_eq_u32 {s.saved}, 0')
A('s_cbranch_scc1 L_fresh')
C('back to the own sequence')
for e in range(8):
    A(f'v_mov_b32 {V(vAcc+4*e)}, {V(vSave+2*e)}')
    A(f'v_mov_b32 {V(vAcc+4*e+1)}, {V(vSave+2*e+1)}')
A(f'v_mov_b32 {V(vM)}, {V(vSave+16)}')
A(f'v_mov_b32 {V(vL)}, {V(vSave+17)}')
A('s_branch L_after')
LB('L_save')
for e in range(8):
    A(f'v_mov_b32 {V(vSave+2*e)}, {V(vAcc+4*e)}')
    A(f'v_mov_b32 {V(vSave+2*e+1)}, {V(vAcc+4*e+1)}')
A(f'v_mov_b32 {V(vSave+16)}, {V(vM)}')
A(f'v_mov_b32 {V(vSave+17)}, {V(vL)}')
A(f's_mov_b32 {s.saved}, 1')
A(f's_mov_b32 {s.segcnt}, 0')
LB('L_fresh')
reset_state()
LB('L_after')
A(f's_cmp_eq_u32 {s.nph}, 2')
A('s_cbranch_scc1 L_own_done')
LB('L_newseg')
A(f'v_readlane_b32 {s.c}, {V(vSc)}, {s.nseq}')
A(f's_mov_b32 {s.needq}, 1')

LB('L_loop')
A(f's_mov_b32 {s.cur}, {s.nxt}')
A(f's_mov_b32 {s.cb}, {s.nseq}')
A(f's_mov_b32 {s.cblk}, {s.nblk}')
A(f's_mov_b32 {s.cph}, {s.nph}')
A(f's_add_u32 {s.segcnt}, {s.segcnt}, 1')
C('K (and Q) must have landed; the s.ex hand-off operations issued behind them may stay in flight')
A(f's_cmp_eq_u32 {s.ex}, 0')
A('s_cbranch_scc1 L_w0')
A(f's_cmp_ge_u32 {s.ex}, {NPF+1}')
A('s_cbranch_scc1 L_w9')
A(f's_cmp_ge_u32 {s.ex}, 3')
A('s_cbranch_scc1 L_w3')
A('s_waitcnt vmcnt(1)')
A('s_branch L_wdone')
LB('L_w9')
A(f's_waitcnt vmcnt({NPF+1})')
A('s_branch L_wdone')
LB('L_w3')
A('s_waitcnt vmcnt(3)')
A('s_branch L_wdone')
LB('L_w0')
A('s_waitcnt vmcnt(0)')
LB('L_wdone')
A(f's_mov_b32 {s.ex}, 0')
for j in range(8):
    for x in v_load(j): A(x)
if TRIM:
    A(f's_mov_b32 s{sV+2}, {KV_BYTES}')
pick_issue()
A(f's_cmp_eq_u32 {s.needq}, 0')
A('s_cbranch_scc1 L_noq')
for j in range(8):
    A(f'ds_read_b128 {VR(vQ+4*j, 4)}, {V(vQrd)} offset:{64*j}')
A(f's_mov_b32 {s.needq}, 0')
LB('L_noq')
for j in range(8):
    A(f'ds_read_b128 {VR(vKf+4*j, 4)}, {V(vKrd)} offset:{64*j}')
for j in range(8):
    A(f's_waitcnt lgkmcnt({7-j})')
    A(f'v_mfma_f32_16x16x32_bf16 {VR(vS,4)}, {VR(vKf+4*j,4)}, {VR(vQ+4*j,4)}, {VR(vS,4) if j else 0}')
decode_pick()
A(f'ds_read_b32 {V(vBT)}, {V(vT0)}')
C('mask the tail of the last block of the own sequence')
A(f's_lshl_b32 {s.t0}, {s.cblk}, 4')
A(f's_sub_u32 {s.t0}, {s.clg}, {s.t0}')
A(f's_cmp_lg_u32 {s.cph}, 0')
A('s_cbranch_scc1 L_nomask')
A(f's_cmp_ge_u32 {s.t0}, 16')
A('s_cbranch_scc1 L_nomask')
for i in range(4):
    A(f'v_cmp_gt_i32 vcc, {s.t0}, {V(vTok)}')
    A(f's_sub_u32 {s.t0}, {s.t0}, 1')
    A('s_nop 0')
    A(f'v_cndmask_b32 {V(vS+i)}, {V(vNegInf)}, {V(vS+i)}, vcc')
LB('L_nomask')
A(f'v_max3_f32 {V(vT0)}, {V(vS)}, {V(vS+1)}, {V(vS+2)}')
A(f'v_max_f32 {V(vT0)}, {V(vT0)}, {V(vS+3)}')
A(f'v_mov_b32 {V(vT1)}, {V(vT0)}')
A('s_nop 1')
A(f'v_permlane16_swap_b32 {V(vT0)}, {V(vT1)}')
A(f'v_max3_f32 {V(vMn)}, {V(vT0)}, {V(vT1)}, {V(vM)}')
A(f'v_cmp_gt_f32 vcc, {V(vMn)}, {V(vM)}')
A('s_cbranch_vccz L_norescale')
A(f'v_sub_f32 {V(vT2)}, {V(vM)}, {V(vMn)}')
A(f'v_mul_f32 {V(vT2)}, {s.c}, {V(vT2)}')
A(f'v_exp_f32 {V(vT2)}, {V(vT2)}')
A(f'v_mov_b32 {V(vM)}, {V(vMn)}')
A('s_nop 0')
A(f'v_mul_f32 {V(vL)}, {V(vL)}, {V(vT2)}')
for e in range(8):
    A(f'v_mul_f32_dpp {V(vAcc+4*e)}, {V(vT2)}, {V(vAcc+4*e)} quad_perm:[0,0,2,2] {DPPF}')
    A(f'v_mul_f32_dpp {V(vAcc+4*e+1)}, {V(vT2)}, {V(vAcc+4*e+1)} quad_perm:[1,1,3,3] {DPPF}')
LB('L_norescale')
A(f'v_mul_f32 {V(vT0)}, {s.c}, {V(vM)}')
for i in range(4):
    A(f'v_fma_f32 {V(vS+i)}, {V(vS+i)}, {s.c}, -{V(vT0)}')
for i in range(4):
    A(f'v_exp_f32 {V(vS+i)}, {V(vS+i)}')
A('s_waitcnt lgkmcnt(0)')
decode_fin()
A(f'v_add_f32 {V(vT0)}, {V(vS)}, {V(vS+1)}')
A(f'v_add_f32 {V(vT1)}, {V(vS+2)}, {V(vS+3)}')
A(f'v_cvt_pk_bf16_f32 {V(vPk)}, {V(vS)}, {V(vS+1)}')
A(f'v_cvt_pk_bf16_f32 {V(vPk+1)}, {V(vS+2)}, {V(vS+3)}')
A(f'v_add_f32 {V(vT0)}, {V(vT0)}, {V(vT1)}')
A(f'v_add_f32 {V(vL)}, {V(vL)}, {V(vT0)}')
C('segment change ahead: s.i = 1; fetch its Q')
A(f's_cmp_lg_u32 {s.nseq}, {s.cb}')
A(f's_cselect_b32 {s.i}, 1, 0')
A(f's_cmp_lg_u32 {s.nph}, {s.cph}')
A(f's_cselect_b32 {s.i}, 1, {s.i}')
A('s_waitcnt vmcnt(0)')
A(f's_cmp_eq_u32 {s.i}, 0')
A('s_cbranch_scc1 L_sameseg')
q_dma()
LB('L_sameseg')
for j in range(8):
    for x in k_dma(j): A(x)
def handoffs(tag):
    A(f's_cmp_eq_u32 {s.pendcnt}, 0')
    A(f's_cbranch_scc1 L_nopend{tag}')
    signal(s.pendb, s.pendcnt)
    A(f's_mov_b32 {s.pendcnt}, 0')
    A(f's_add_u32 {s.ex}, {s.ex}, 1')
    LB(f'L_nopend{tag}')
    A(f's_cmp_lg_u32 {s.chkpend}, 1')
    A(f's_cbranch_scc1 L_nochk{tag}')
    chk_eval(tag)
    A(f's_mov_b32 {s.chkpend}, 0')
    LB(f'L_nochk{tag}')
handoffs('a')
A(f's_cmp_lg_u32 {s.chkpend}, 2')
A('s_cbranch_scc1 L_nochk2')
chk_issue()
A(f's_mov_b32 {s.chkpend}, 1')
A(f's_add_u32 {s.ex}, {s.ex}, 1')
LB('L_nochk2')
A(f's_cmp_lg_u32 {s.pf}, 1')
A('s_cbranch_scc1 L_nopf')
A(f's_mov_b32 {s.slot}, {s.slot0}')
A(f's_mov_b32 {s.t1}, {s.n}')
pf_issue()
A(f's_mov_b32 {s.pf}, 3')
A(f's_add_u32 {s.ex}, {s.ex}, {NPF+1}')
LB('L_nopf')
def perms(g):
    r = []
    for rr in range(4):
        for q in range(2):
            e = 2*rr + q
            sel = s.sel1 if q else s.sel0
            d = vKf + 16*g + 2*e
            r.append(f'v_perm_b32 {V(d)}, {V(vV+4*(4*g+1)+rr)}, {V(vV+4*(4*g)+rr)}, {sel}')
            r.append(f'v_perm_b32 {V(d+1)}, {V(vV+4*(4*g+3)+rr)}, {V(vV+4*(4*g+2)+rr)}, {sel}')
    return r
def pv(g, e):
    return f'v_mfma_f32_4x4x4_16b_bf16 {VR(vAcc+4*e,4)}, {VR(vPk,2)}, {VR(vKf+16*g+2*e,2)}, {VR(vAcc+4*e,4)} cbsz:3 abid:{4*g}'
for x in perms(0): A(x)
p1 = perms(1)
for e in range(8):
    A(pv(0, e))
    A(p1[2*e]); A(p1[2*e+1])
A('s_nop 0')
for e in range(8):
    A(pv(1, e))
A(f's_cmp_eq_u32 {s.i}, 0')
A('s_cbranch_scc1 L_loop')
A(f's_cmp_lg_u32 {s.cph}, 0')
A('s_cbranch_scc1 L_deposit')
A(f's_cmp_eq_u32 {s.nph}, 1')
A('s_nop 0')
A('s_cbranch_scc1 L_save')

LB('L_own_done')
A(f'v_readlane_b32 {s.c}, {V(vSc)}, {s.g}')
stamp(4)
A('s_nop 1')
merge_halves()
A('s_waitcnt vmcnt(0)')
lds_record(s.ldsK)
handoffs('b')
C('LDS addresses of the final merge')
A(f'v_and_b32 {V(vT0)}, 7, {V(vLane)}')
A(f'v_mul_u32_u24 {V(vT0)}, {KSLOT}, {V(vT0)}')
A(f's_and_b32 {s.t0}, {s.h}, 4')
A(f's_lshl_b32 {s.t0}, {s.t0}, 1')
A(f's_add_u32 {s.t0}, {s.t0}, {LDS_K + 2048}')
A(f'v_add_u32 {V(vT0)}, {s.t0}, {V(vT0)}')
A(f'v_add_u32 {V(vT1)}, {LDS_K}, {V(vSlOff)}')
A('s_waitcnt lgkmcnt(0)')
A('s_barrier')
stamp(5)
A(f'ds_read_b32 {V(vPick)}, {V(vMBa)}')
A(f'ds_read_b64 {VR(vXS,2)}, {V(vT0)}')
for k in range(8):
    A(f'ds_read_b32 {V(vKf+k)}, {V(vT1)} offset:{k*KSLOT}')
A(f's_cmp_eq_u32 {s.exg}, 0')
A('s_cbranch_scc1 L_fast')
A('s_waitcnt lgkmcnt(9)')
A(f'v_readfirstlane_b32 {s.t0}, {V(vPick)}')
A(f's_lshr_b32 {s.t0}, {s.t0}, 16')
A(f's_cmp_lg_u32 {s.t0}, 0')
A('s_cbranch_scc1 L_fast')
C('not seen complete yet: look once more')
A(f's_cmp_lg_u32 {s.h}, 0')
A('s_cbranch_scc1 L_rechk')
chk_issue()
A('s_waitcnt vmcnt(0)')
chk_eval('c')
A('s_waitcnt lgkmcnt(0)')
LB('L_rechk')
A('s_barrier')
A(f'ds_read_b32 {V(vPick)}, {V(vMBa)} offset:4')
A('s_waitcnt lgkmcnt(0)')
A(f'v_readfirstlane_b32 {s.t0}, {V(vPick)}')
A(f's_lshr_b32 {s.t0}, {s.t0}, 16')
A(f's_cmp_lg_u32 {s.t0}, 0')
A('s_cbranch_scc1 L_fast')
A(f's_mov_b32 {s.n}, 0')
A(f's_mov_b32 {s.pf}, 4')
LB('L_fast')
A(f's_mov_b32 {s.slot}, {s.slot0}')
A(f's_mov_b32 {s.k0}, 0')
A(f's_and_b32 {s.t0}, {s.pf}, 6')
A(f's_cmp_lg_u32 {s.t0}, 0')
A('s_cbranch_scc1 L_havepf')
A(f's_mov_b32 {s.t1}, {s.n}')
pf_issue()
LB('L_havepf')
C('first pass: 8 LDS partials and up to NPF helper records')
A(f's_min_u32 {s.t1}, {s.n}, {NPF}')
A(f'v_and_b32 {V(vT0)}, 15, {V(vLane)}')
A(f'v_cmp_gt_u32 vcc, {s.t1}, {V(vT0)}')
A(f'v_cmp_gt_u32 {T2P}, 8, {V(vT0)}')
A('s_waitcnt vmcnt(0) lgkmcnt(0)')
A(f'v_cndmask_b32 {V(vYS)}, {V(vNegInf)}, {V(vYS)}, vcc')
A(f'v_cndmask_b32 {V(vYS+1)}, 0, {V(vYS+1)}, vcc')
A(f'v_cndmask_b32 {V(vXS)}, {V(vNegInf)}, {V(vXS)}, {T2P}')
A(f'v_max_f32 {V(vM)}, {V(vYS)}, {V(vXS)}')
row_allreduce('max', vM)
A(f'v_sub_f32 {V(vWA)}, {V(vXS)}, {V(vM)}')
A(f'v_sub_f32 {V(vWB)}, {V(vYS)}, {V(vM)}')
A(f'v_exp_f32 {V(vWA)}, {V(vWA)}')
A(f'v_exp_f32 {V(vWB)}, {V(vWB)}')
A(f'v_mov_b32 {V(vT3)}, 0')
A(f'v_mul_f32 {V(vL)}, {V(vWA)}, {V(vXS+1)}')
A(f'v_fmac_f32 {V(vL)}, {V(vWB)}, {V(vYS+1)}')
for k in range(8):
    A(f'v_fmac_f32_dpp {V(vT3)}, {V(vWA)}, {V(vKf+k)} row_newbcast:{k} {DPPF}')
for sh in (1, 2, 4, 8):
    A(f'v_add_f32_dpp {V(vL)}, {V(vL)}, {V(vL)} row_ror:{sh} {DPPF}')
    A('s_nop 1')
A(f's_cmp_eq_u32 {s.n}, 0')
A('s_cbranch_scc1 L_merged')
for k in range(NPF):
    A(f'v_fmac_f32_dpp {V(vT3)}, {V(vWB)}, {V(vY+k)} row_newbcast:{k} {DPPF}')
LB('L_more')
A(f's_add_u32 {s.k0}, {s.k0}, {NPF}')
A(f's_cmp_ge_u32 {s.k0}, {s.n}')
A('s_cbranch_scc1 L_merged')
C('more helper records: further passes')
A(f's_add_u32 {s.slot}, {s.slot}, {NPF}')
A(f's_sub_u32 {s.t1}, {s.n}, {s.k0}')
pf_issue()
A('s_waitcnt vmcnt(0)')
A(f'v_cndmask_b32 {V(vYS)}, {V(vNegInf)}, {V(vYS)}, vcc')
A(f'v_max_f32 {V(vT0)}, {V(vYS)}, {V(vM)}')
row_allreduce('max', vT0)
A(f'v_sub_f32 {V(vWB)}, {V(vYS)}, {V(vT0)}')
A(f'v_sub_f32 {V(vT1)}, {V(vM)}, {V(vT0)}')
A(f'v_exp_f32 {V(vWB)}, {V(vWB)}')
A(f'v_exp_f32 {V(vT1)}, {V(vT1)}')
A(f'v_mov_b32 {V(vM)}, {V(vT0)}')
A(f'v_mul_f32 {V(vT2)}, {V(vWB)}, {V(vYS+1)}')
row_allreduce('add', vT2)
A(f'v_fma_f32 {V(vL)}, {V(vL)}, {V(vT1)}, {V(vT2)}')
A(f'v_mul_f32 {V(vT3)}, {V(vT3)}, {V(vT1)}')
for k in range(NPF):
    A(f'v_fmac_f32_dpp {V(vT3)}, {V(vWB)}, {V(vY+k)} row_newbcast:{k} {DPPF}')
A('s_branch L_more')
LB('L_merged')
A(f's_cmp_eq_u32 {s.pf}, 4')
A('s_cbranch_scc1 L_slow')
A(f'v_rcp_f32 {V(vT0)}, {V(vL)}')
A(f's_lshl_b32 {s.t0}, {s.g}, 3')
A(f's_add_u32 {s.t0}, {s.t0}, {s.j}')
A(f's_lshl_b32 {s.t0}, {s.t0}, 10')
A(f'v_bfe_u32 {V(vT1)}, {V(vSlOff)}, 4, 5')
A(f'v_lshlrev_b32 {V(vT1)}, 4, {V(vT1)}')
A(f'v_bfe_u32 {V(vT2)}, {V(vSlOff)}, 2, 2')
A(f'v_lshl_add_u32 {V(vT1)}, {V(vT2)}, 1, {V(vT1)}')
A(f's_bfe_u32 {s.t1}, {s.h}, 0x10001')
A(f's_lshl_b32 {s.t1}, {s.t1}, 3')
A(f's_add_u32 {s.t0}, {s.t0}, {s.t1}')
A(f's_and_b32 {s.t1}, {s.h}, 4')
A(f's_lshl_b32 {s.t1}, {s.t1}, 7')
A(f's_add_u32 {s.t0}, {s.t0}, {s.t1}')
A(f'v_mul_f32 {V(vT3)}, {V(vT3)}, {V(vT0)}')
A(f'v_cvt_pk_bf16_f32 {V(vT3)}, {V(vT3)}, {V(vT3)}')
A(f'buffer_store_short {V(vT3)}, {V(vT1)}, {srd(sOUT)}, {s.t0} offen')
A('s_branch L_tail')
LB('L_slow')
C('helpers still at work: publish the merged own partial and arrive like a helper')
A(f's_add_u32 {s.slot}, {s.g}, {OWNSLOT}')
rec_addr(s.slot, s.t1, s.t0)
A(f's_and_b32 {s.t2}, {s.h}, 4')
A(f's_lshl_b32 {s.t2}, {s.t2}, 1')
A(f's_add_u32 {s.t0}, {s.t0}, {s.t2}')
A(f'v_mov_b32 {V(vT4)}, {V(vM)}')
A(f'v_mov_b32 {V(vT5)}, {V(vL)}')
A(f'v_mov_b32 {V(vT0)}, 0')
A(f'buffer_store_dword {V(vT3)}, {V(vSlOff)}, {srd(sWS)}, {s.t1} offen sc1')
A('s_mov_b64 exec, 1')
A(f'buffer_store_dwordx2 {VR(vT4,2)}, {V(vT0)}, {srd(sWS)}, {s.t0} offen sc1')
A('s_mov_b64 exec, -1')
A('s_waitcnt vmcnt(0)')
A('s_barrier')
A(f's_cmp_lg_u32 {s.h}, 0')
A('s_cbranch_scc1 L_tail')
A(f's_mov_b32 {s.i}, 128')
signal(s.g, s.i)

LB('L_tail')
stamp(6)
A(f's_cmp_eq_u32 {s.seg}, 0')
A('s_cbranch_scc1 L_fin')
A(f's_mov_b32 {s.i}, 0')
A('s_waitcnt vmcnt(0)')
LB('L_chk')
A(f's_cmp_ge_u32 {s.i}, {s.seg}')
A('s_cbranch_scc1 L_fin')
A(f'v_readlane_b32 {s.t3}, {V(vSegB)}, {s.i}')
A(f'v_readlane_b32 {s.t0}, {V(vRet)}, {s.i}')
A(f's_add_u32 {s.i}, {s.i}, 1')
A(f's_and_b32 {s.cb}, {s.t3}, 31')
A(f'v_readlane_b32 {s.t2}, {V(vEx)}, {s.cb}')
A(f's_and_b32 {s.t1}, {s.j}, 3')
A(f's_lshl_b32 {s.t1}, {s.t1}, 3')
A(f's_lshr_b32 {s.t0}, {s.t0}, {s.t1}')
A(f's_and_b32 {s.t0}, {s.t0}, 0xff')
A(f's_bfe_u32 {s.t3}, {s.t3}, 0x80008')
A(f's_add_u32 {s.t0}, {s.t0}, {s.t3}')
A(f's_add_u32 {s.t2}, {s.t2}, 128')
A(f's_cmp_lg_u32 {s.t0}, {s.t2}')
A('s_cbranch_scc1 L_chk')
helper_span(s.cb)
cM, cL = vM, vL
A(f'v_mov_b32 {V(cM)}, {V(vNegInf)}')
A(f'v_mov_b32 {V(cL)}, 0')
for e in range(8):
    A(f'v_mov_b32 {V(cAcc+e)}, 0')
A(f's_add_u32 {s.slot}, {s.cb}, {OWNSLOT}')
A(f's_mov_b32 {s.nblk}, 1')
A(f's_mov_b32 {s.k0}, 0')
LB('L_cchunk')
rec_addr(s.slot, s.t2, s.t0)
A(f'v_and_b32 {V(vT0)}, 15, {V(vLane)}')
A(f'v_cmp_gt_u32 vcc, {s.nblk}, {V(vT0)}')
A(f'v_mov_b32 {V(vT1)}, {OOB_WS}')
A('s_nop 0')
A(f'v_cndmask_b32 {V(vT1)}, {V(vT1)}, {V(vStOff)}, vcc')
A(f'buffer_load_dwordx2 {VR(cSt,2)}, {V(vT1)}, {srd(sWS)}, {s.t0} offen sc1')
for k in range(CH):
    A(f's_cmp_gt_u32 {s.nblk}, {k}')
    A(f's_cselect_b32 {s.t3}, {s.t2}, {OOB_WS}')
    A(f'buffer_load_dwordx4 {VR(cD+8*k,4)}, {V(vPoff)}, {srd(sWS)}, {s.t3} offen sc1')
    A(f'buffer_load_dwordx4 {VR(cD+8*k+4,4)}, {V(vPoff)}, {srd(sWS)}, {s.t3} offen offset:512 sc1')
    A(f's_add_u32 {s.t2}, {s.t2}, 16384')
A(f's_waitcnt vmcnt({2*CH})')
A(f'v_cndmask_b32 {V(cSt)}, {V(vNegInf)}, {V(cSt)}, vcc')
A(f'v_max_f32 {V(vT0)}, {V(cSt)}, {V(cM)}')
row_allreduce('max', vT0)
A(f'v_sub_f32 {V(cW)}, {V(cSt)}, {V(vT0)}')
A(f'v_sub_f32 {V(vT1)}, {V(cM)}, {V(vT0)}')
A(f'v_exp_f32 {V(cW)}, {V(cW)}')
A(f'v_exp_f32 {V(vT1)}, {V(vT1)}')
A(f'v_mov_b32 {V(cM)}, {V(vT0)}')
A(f'v_mul_f32 {V(vT2)}, {V(cW)}, {V(cSt+1)}')
row_allreduce('add', vT2)
A(f'v_fma_f32 {V(cL)}, {V(cL)}, {V(vT1)}, {V(vT2)}')
for e in range(8):
    A(f'v_mul_f32 {V(cAcc+e)}, {V(cAcc+e)}, {V(vT1)}')
for k in range(CH):
    A(f's_waitcnt vmcnt({2*(CH-1-k)})')
    for e in range(8):
        A(f'v_fmac_f32_dpp {V(cAcc+e)}, {V(cW)}, {V(cD+8*k+e)} row_newbcast:{k} {DPPF}')
A(f's_add_u32 {s.slot}, {s.slot0}, {s.k0}')
A(f's_sub_u32 {s.nblk}, {s.n}, {s.k0}')
A(f's_min_u32 {s.nblk}, {s.nblk}, {CH}')
A(f's_mov_b32 {s.t0}, {s.k0}')
A(f's_add_u32 {s.k0}, {s.k0}, {CH}')
A(f's_cmp_lt_u32 {s.t0}, {s.n}')
A('s_cbranch_scc1 L_cchunk')
A(f'v_rcp_f32 {V(vT0)}, {V(cL)}')
A(f's_lshl_b32 {s.t0}, {s.cb}, 13')
A(f's_lshl_b32 {s.t1}, {s.j}, 10')
A(f's_add_u32 {s.t0}, {s.t0}, {s.t1}')
for e in range(8):
    A(f'v_mul_f32 {V(cAcc+e)}, {V(cAcc+e)}, {V(vT0)}')
for e in range(4):
    A(f'v_cvt_pk_bf16_f32 {V(vS+e)}, {V(cAcc+2*e)}, {V(cAcc+2*e+1)}')
A(f'buffer_store_dwordx4 {VR(vS,4)}, {V(vOutOff)}, {srd(sOUT)}, {s.t0} offen')
A('s_branch L_chk')
LB('L_fin')
if STAMPS:
    A('s_waitcnt vmcnt(0)')
    stamp(7)
    stamp_flush()
LB('L_end')
A('s_endpgm')
L.append('.section .rodata,"a"')
L.append('.p2align 6')
L.append(f'.amdhsa_kernel {KN}')
L.append(f'  .amdhsa_next_free_vgpr {NVGPR}')
L.append('  .amdhsa_next_free_sgpr 102')
L.append(f'  .amdhsa_accum_offset {(NVGPR+3)//4*4}')
L.append('  .amdhsa_group_segment_fixed_size 0')
L.append('  .amdhsa_kernarg_size 64')
L.append('  .amdhsa_user_sgpr_count 2')
L.append('  .amdhsa_user_sgpr_kernarg_segment_ptr 1')
L.append('  .amdhsa_system_sgpr_workgroup_id_x 1')
L.append('.end_amdhsa_kernel')
open(out, 'w').write('\n'.join(x for x in L if x is not None) + '\n')
print('wrote', out, 'lds', LDS_TOTAL, 'sgpr top', idx)
```

```python
import sys, struct
out = sys.argv[1] if len(sys.argv) > 1 else 'standalone__paged_block_table_kv_pagedattention__sampling.s'
OPT = dict(nt='nt', stamps='0', chk='16', forceslow='0', delta='5', trim='1', delayhelp='0', ntk='', ntv='')
for a in sys.argv[2:]:
    k, v = a.split('='); OPT[k] = v
NT = OPT['nt'].replace('+', ' ')
if NT == 'none': NT = ''
def pol(x):
    x = OPT[x].replace('+', ' ')
    return NT if x == '' else ('' if x == 'none' else x)
NTK = pol('ntk'); NTV = pol('ntv')
STAMPS = int(OPT['stamps'])
TRIM = int(OPT['trim'])
KN = 'standalone__paged_block_table_kv_pagedattention__sampling_kernel'
L = []
def A(s): L.append('    ' + s)
def LB(s): L.append(s + ':')
def C(s): L.append('    ; ' + s)
def f32(x): return '0x%08x' % struct.unpack('<I', struct.pack('<f', x))[0]

NWG = 256
KV_BYTES = 4100 * 65536
WS_BYTES = 1074790400
LDS_K = 16384
KSLOT = 8448
LDS_Q = LDS_K + 8 * KSLOT
LDS_MB = LDS_Q + 8 * 1024
LDS_AR = LDS_MB + 64
REC = 2080
NA = 4
LDS_TOTAL = LDS_AR + NA * 8 * REC
assert LDS_TOTAL <= 163840
STATS = 0x800000
OWNSLOT = 64
OOB_KV = 0x20000000
OOB_WS = 0x60000000
SCALE = 1.4426950408889634 / 16.0
CHK = int(OPT['chk'])
DELTA = int(OPT['delta'])
NPF = 8

sK, sV, sQ, sWS, sDBG, sOUT, sBT, sCL = 4, 8, 12, 16, 20, 24, 28, 32
def srd(b): return f's[{b}:{b+3}]'
KA = 36
names = '''h g j xs xe hc own exg clg nbg cur cb cblk cph c nxt nseq nblk nph segcnt pendb pendcnt seg needq pf chk chkpend
n t0 t1 t2 t3 slot0 rank ldsK ldsQ hoff sel0 sel1 T k0 i slot ex saved mex rkx0'''.split()
R = {}
idx = 52
for nme in names:
    R[nme] = idx; idx += 1
assert idx <= 100, idx
class _S:
    def __getattr__(self, k): return f's{R[k]}'
s = _S()
assert R['t0'] % 2 == 0 and R['t2'] % 2 == 0, (R['t0'], R['t2'])
T2P = f"s[{R['t2']}:{R['t2']+1}]"
s_stamp = 36
vLane, vKVoff, vKrd, vQrd, vQoff, vTok, vPoff, vLane4 = 0, 1, 2, 3, 4, 5, 6, 7
vNb, vCl, vSc, vEx, vEXe, vSp, vSPe, vCls = 8, 9, 10, 11, 12, 13, 14, 15
vSegB, vM, vL, vNegInf, vT0, vT1, vT2, vT3 = 16, 17, 18, 19, 20, 21, 22, 23
vS = 24
vPk = 28
vPick, vMn = 30, 31
vOutOff, vStOff, vT4, vT5 = 32, 33, 34, 35
vRet, vChk, vBT, vMBa = 36, 37, 38, 39
vQ = 40
vKf = 72
vV = 104
vAcc = 136
vY = 168
vYS = 176
vSlOff, vWA, vWB = 178, 179, 180
vXS = 182
vSave = 184
NVGPR = 202
CH = 15
cD = 40; cAcc = 160; cSt = 24; cW = vT4
def V(x): return f'v{x}'
def VR(x, n): return f'v[{x}:{x+n-1}]'
DPPF = 'row_mask:0xf bank_mask:0xf'

def stamp(i):
    if STAMPS:
        A('s_memrealtime s[100:101]')
        A('s_waitcnt lgkmcnt(0)')
        A(f's_mov_b32 s{s_stamp+i}, s100')
def stamp_flush():
    if STAMPS:
        A('s_lshl_b32 s100, s2, 3')
        A(f's_add_u32 s100, s100, {s.h}')
        A('s_lshl_b32 s100, s100, 6')
        A('s_add_u32 s100, s100, 0x2000000')
        for i in range(8):
            A(f'v_mov_b32 v{40+i}, s{s_stamp+i}')
        A('v_mov_b32 v48, 0')
        A('s_mov_b64 exec, 1')
        A(f'buffer_store_dwordx4 v[40:43], v48, {srd(sWS)}, s100 offen')
        A(f'buffer_store_dwordx4 v[44:47], v48, {srd(sWS)}, s100 offen offset:16')
        A('s_mov_b64 exec, -1')

hdr = open('standalone__paged_block_table_kv_pagedattention__sampling.s.ref').read().split('\n')
for line in hdr:
    if line.startswith('; @launch'):
        L.append(f'; @launch grid=({NWG},1,1) block=(512,1,1) lds={LDS_TOTAL}')
        break
    L.append(line)
L.append('.amdgcn_target "amdgcn-amd-amdhsa--gfx950"')
L.append('.text')
L.append(f'.globl {KN}')
L.append('.p2align 8')
L.append(f'.type {KN},@function')
LB(KN)
A(f's_cmp_ge_u32 s2, {NWG}')
A('s_cbranch_scc1 L_end')
if STAMPS:
    A('s_memrealtime s[100:101]')
A(f's_load_dwordx16 s[{KA}:{KA+15}], s[0:1], 0')
A(f'v_lshrrev_b32 {V(vT0)}, 6, v0')
A(f'v_and_b32 {V(vLane)}, 63, v0')
A(f'v_readfirstlane_b32 {s.h}, {V(vT0)}')
C('lane constants')
A(f'v_lshrrev_b32 {V(vT0)}, 5, {V(vLane)}')
A(f'v_and_b32 {V(vT1)}, 31, {V(vLane)}')
A(f'v_lshlrev_b32 {V(vT2)}, 4, {V(vT1)}')
A(f'v_lshl_add_u32 {V(vKVoff)}, {V(vT0)}, 15, {V(vT2)}')
A(f'v_lshl_add_u32 {V(vOutOff)}, {V(vT0)}, 9, {V(vT2)}')
A(f'v_lshl_add_u32 {V(vPoff)}, {V(vT0)}, 10, {V(vT2)}')
A(f'v_and_b32 {V(vT2)}, 15, {V(vLane)}')
A(f'v_lshlrev_b32 {V(vT2)}, 10, {V(vT2)}')
A(f'v_lshl_add_u32 {V(vStOff)}, {V(vT0)}, 3, {V(vT2)}')
A(f'v_lshlrev_b32 {V(vQoff)}, 4, {V(vLane)}')
A(f'v_lshlrev_b32 {V(vLane4)}, 2, {V(vLane)}')
A(f'v_lshrrev_b32 {V(vT0)}, 4, {V(vLane)}')
A(f'v_lshlrev_b32 {V(vTok)}, 2, {V(vT0)}')
A(f'v_lshlrev_b32 {V(vT2)}, 4, {V(vT0)}')
A(f'v_bfe_u32 {V(vT1)}, {V(vLane)}, 3, 1')
A(f'v_lshl_add_u32 {V(vT3)}, {V(vT1)}, 9, {V(vT2)}')
A(f'v_and_b32 {V(vT1)}, 7, {V(vLane)}')
A(f'v_mul_u32_u24 {V(vT1)}, 1056, {V(vT1)}')
A(f's_mul_i32 {s.ldsK}, {s.h}, {KSLOT}')
A(f's_add_u32 {s.ldsK}, {s.ldsK}, {LDS_K}')
A(f's_lshl_b32 {s.ldsQ}, {s.h}, 10')
A(f's_add_u32 {s.ldsQ}, {s.ldsQ}, {LDS_Q}')
A(f'v_add3_u32 {V(vKrd)}, {V(vT3)}, {V(vT1)}, {s.ldsK}')
A(f'v_and_b32 {V(vT1)}, 1, {V(vLane)}')
A(f'v_lshl_add_u32 {V(vT2)}, {V(vT1)}, 9, {V(vT2)}')
A(f'v_add_u32 {V(vQrd)}, {s.ldsQ}, {V(vT2)}')
A(f'v_mov_b32 {V(vNegInf)}, 0xff800000')
A(f's_mov_b32 {s.sel0}, 0x05040100')
A(f's_mov_b32 {s.sel1}, 0x07060302')
A(f's_bfe_u32 {s.j}, s2, 0x30001')
A(f's_lshl_b32 {s.hoff}, {s.j}, 9')
for z in ('seg', 'pendcnt', 'chkpend', 'segcnt', 'ex', 'saved'):
    A(f's_mov_b32 {getattr(s, z)}, 0')
C('LDS words: 0 pick counter + flag, 1 re-check flag, 4..7 deposit areas (generation tag in bits 16+)')
A(f'v_mov_b32 {V(vMBa)}, {LDS_MB}')
A(f'v_and_b32 {V(vT3)}, 124, {V(vLane4)}')
A(f'v_add_u32 {V(vT0)}, -4, {V(vLane)}')
A(f'v_max_i32 {V(vT0)}, 0, {V(vT0)}')
A(f'v_lshlrev_b32 {V(vT0)}, 16, {V(vT0)}')
A(f'v_add_u32 {V(vT1)}, {LDS_MB}, {V(vLane4)}')
A(f's_lshl_b32 {s.t0}, {s.h}, 11')
A('s_mov_b64 exec, 0xff')
A(f'ds_write_b32 {V(vT1)}, {V(vT0)}')
A('s_mov_b64 exec, -1')
A('s_waitcnt lgkmcnt(0)')
def mksrd(b, ka, nbytes):
    A(f's_mov_b32 s{b}, s{KA+ka}')
    A(f's_and_b32 s{b+1}, s{KA+ka+1}, 0xffff')
    A(f's_mov_b32 s{b+2}, {nbytes}')
    A(f's_mov_b32 s{b+3}, 0x20000')
mksrd(sCL, 8, 128)
mksrd(sBT, 6, 16384)
A(f'buffer_load_dword {V(vCl)}, {V(vT3)}, {srd(sCL)}, 0 offen')
A(f's_mov_b32 m0, {s.t0}')
mksrd(sK, 2, KV_BYTES)
A(f'buffer_load_dwordx4 {V(vQoff)}, {srd(sBT)}, {s.t0} offen lds')
A(f'buffer_load_dwordx4 {V(vQoff)}, {srd(sBT)}, {s.t0} offen offset:1024 lds')
mksrd(sV, 4, KV_BYTES)
mksrd(sQ, 0, 32 * 16 * 512)
mksrd(sWS, 14, WS_BYTES)
mksrd(sDBG, 12, 256)
mksrd(sOUT, 10, 32 * 16 * 512)
if STAMPS:
    A(f's_mov_b32 s{s_stamp}, s100')
stamp(1)
A(f'v_mov_b32 {V(vT1)}, 2048')
A(f'v_mov_b32 {V(vT2)}, {f32(SCALE)}')
A(f'v_and_b32 {V(vT4)}, 31, {V(vLane)}')
A(f'v_lshlrev_b32 {V(vT5)}, {V(vT4)}, 1')
A(f'v_add_u32 {V(vT4)}, -1, {V(vT5)}')
A(f's_mov_b32 {s.t1}, 0')
A('s_waitcnt vmcnt(2)')
C('effective context length, blocks per sequence, scale')
A(f'v_add_u32 {V(vT0)}, -1, {V(vCl)}')
A(f'v_cmp_gt_u32 vcc, {V(vT1)}, {V(vT0)}')
A(f'v_cmp_ge_i32 {T2P}, 0, {V(vCl)}')
A('s_nop 0')
A(f'v_cndmask_b32 {V(vCl)}, {V(vT1)}, {V(vCl)}, vcc')
A(f'v_cndmask_b32 {V(vSc)}, {V(vT2)}, 0, {T2P}')
A(f'v_add_u32 {V(vNb)}, 15, {V(vCl)}')
A(f'v_lshrrev_b32 {V(vNb)}, 4, {V(vNb)}')
A(f'v_mov_b32 {V(vT0)}, {V(vNb)}')
C('binary search for the median length (interleaved with the DPP scan of the block counts):')
C('the 16 longest sequences go to even-numbered workgroups (larger budget), the others to odd ones')
steps = [f'v_add_u32_dpp {V(vT0)}, {V(vT0)}, {V(vT0)} row_shr:{sh} {DPPF} bound_ctrl:0' for sh in (1, 2, 4, 8)]
steps.append(f'v_add_u32_dpp {V(vT0)}, {V(vT0)}, {V(vT0)} row_bcast:15 row_mask:0xa bank_mask:0xf')
for n, bit in enumerate((128, 64, 32, 16, 8, 4, 2, 1)):
    A(f's_add_u32 {s.t2}, {s.t1}, {bit-1}')
    A(f'v_cmp_lt_u32 vcc, {s.t2}, {V(vNb)}')
    if 1 <= n <= len(steps): A(steps[n-1])
    A(f's_bcnt1_i32_b32 {s.t3}, vcc_lo')
    A(f's_add_u32 {s.t2}, {s.t2}, 1')
    A(f's_cmp_gt_u32 {s.t3}, 16')
    A(f's_cselect_b32 {s.t1}, {s.t2}, {s.t1}')
A(f'v_cmp_lt_u32 vcc, {s.t1}, {V(vNb)}')
A(f'v_cmp_eq_u32 {T2P}, {s.t1}, {V(vNb)}')
A(f'v_readlane_b32 {s.T}, {V(vT0)}, 31')
A(f's_bcnt1_i32_b32 {s.t0}, vcc_lo')
A(f's_mov_b32 {s.t1}, vcc_lo')
A(f's_sub_u32 {s.t0}, 16, {s.t0}')
A(f'v_and_b32 {V(vT3)}, {s.t2}, {V(vT4)}')
A(f'v_bcnt_u32_b32 {V(vT3)}, {V(vT3)}, 0')
A(f'v_cmp_gt_u32 vcc, {s.t0}, {V(vT3)}')
A(f's_and_b32 {s.t2}, {s.t2}, vcc_lo')
A(f's_or_b32 {s.k0}, {s.t1}, {s.t2}')
A(f's_not_b32 {s.t2}, {s.k0}')
A('s_bitcmp1_b32 s2, 0')
A(f's_cselect_b32 {s.t1}, {s.t2}, {s.k0}')
A(f'v_and_b32 {V(vT3)}, {s.t1}, {V(vT4)}')
A(f'v_bcnt_u32_b32 {V(vT3)}, {V(vT3)}, 0')
A(f's_lshr_b32 {s.t2}, s2, 4')
A(f'v_cmp_eq_u32 vcc, {s.t2}, {V(vT3)}')
A(f's_and_b32 {s.t1}, {s.t1}, vcc_lo')
A(f's_ff1_i32_b32 {s.g}, {s.t1}')
A(f'v_readlane_b32 {s.nbg}, {V(vNb)}, {s.g}')
A(f'v_readlane_b32 {s.clg}, {V(vCl)}, {s.g}')
C('first block of this wave: block nb-1-wave of the own sequence (dropped later if it is not an own block)')
A(f's_mov_b32 {s.nseq}, {s.g}')
A(f's_sub_u32 {s.nblk}, {s.nbg}, {s.h}')
A(f's_sub_u32 {s.nblk}, {s.nblk}, 1')
A(f's_cmp_lt_u32 {s.h}, {s.nbg}')
A(f's_cselect_b32 {s.nph}, 0, 2')
A(f's_cselect_b32 {s.nblk}, {s.nblk}, 0')

def bt_addr():
    A(f's_lshl_b32 {s.t0}, {s.nseq}, 7')
    A(f's_add_u32 {s.t0}, {s.t0}, {s.nblk}')
    A(f's_lshl_b32 {s.t0}, {s.t0}, 2')
    A(f'v_mov_b32 {V(vT0)}, {s.t0}')
lab = [0]
def decode_pick():
    lab[0] += 1; n = lab[0]
    A(f'v_readfirstlane_b32 {s.t1}, {V(vPick)}')
    A(f's_and_b32 {s.t0}, {s.t1}, 0xffff')
    A(f's_lshr_b32 {s.t1}, {s.t1}, 16')
    A(f's_or_b32 {s.pf}, {s.pf}, {s.t1}')
    A(f's_cmp_eq_u32 {s.t0}, {s.chk}')
    A(f's_cselect_b32 {s.chkpend}, 2, {s.chkpend}')
    A(f's_cmp_ge_u32 {s.t0}, {s.hc}')
    A(f's_cbranch_scc1 L_dn_own{n}')
    A(f's_add_u32 {s.t0}, {s.t0}, {s.xs}')
    A(f'v_cmp_ge_u32 vcc, {s.t0}, {V(vEXe)}')
    A(f's_bcnt1_i32_b32 {s.nseq}, vcc_lo')
    A(f'v_readlane_b32 {s.t2}, {V(vEXe)}, {s.nseq}')
    A(f'v_readlane_b32 {s.t1}, {V(vEx)}, {s.nseq}')
    A(f's_sub_u32 {s.t2}, {s.t2}, {s.t1}')
    A(f's_sub_u32 {s.nblk}, {s.t0}, {s.t2}')
    A(f's_mov_b32 {s.nph}, 1')
    A(f's_branch L_dn_bt{n}')
    LB(f'L_dn_own{n}')
    A(f's_sub_u32 {s.t0}, {s.t0}, {s.hc}')
    A(f's_add_u32 {s.t0}, {s.t0}, 8')
    A(f's_mov_b32 {s.nseq}, {s.g}')
    A(f's_sub_u32 {s.nblk}, {s.nbg}, {s.t0}')
    A(f's_sub_u32 {s.nblk}, {s.nblk}, 1')
    A(f's_cmp_lt_u32 {s.t0}, {s.own}')
    A(f's_cselect_b32 {s.nph}, 0, 2')
    A(f's_cselect_b32 {s.nblk}, {s.nblk}, 0')
    LB(f'L_dn_bt{n}')
    bt_addr()
def decode_fin():
    A(f'v_readfirstlane_b32 {s.nxt}, {V(vBT)}')
    A(f's_lshl_b32 {s.nxt}, {s.nxt}, 16')
    A(f's_add_u32 {s.nxt}, {s.nxt}, {s.hoff}')
    A(f's_cmp_eq_u32 {s.nph}, 2')
    A(f's_cselect_b32 {s.nxt}, {OOB_KV}, {s.nxt}')
def q_dma():
    A(f's_lshl_b32 {s.t1}, {s.hoff}, 1')
    A(f's_lshl_b32 {s.t2}, {s.nseq}, 13')
    A(f's_mov_b32 m0, {s.ldsQ}')
    A(f's_add_u32 {s.t1}, {s.t1}, {s.t2}')
    A(f'buffer_load_dwordx4 {V(vQoff)}, {srd(sQ)}, {s.t1} offen lds')
def k_dma(j):
    r = []
    if j == 0:
        r.append(f's_mov_b32 m0, {s.ldsK}')
        r.append(f's_mov_b32 {s.t3}, {s.nxt}')
    else:
        r.append('s_add_u32 m0, m0, 1056')
        r.append(f's_add_u32 {s.t3}, {s.t3}, 4096')
    r.append(f'buffer_load_dwordx4 {V(vKVoff)}, {srd(sK)}, {s.t3} offen {NTK} lds')
    return r
def v_load(j):
    r = []
    if j == 0:
        r.append(f'buffer_load_dwordx4 {VR(vV, 4)}, {V(vKVoff)}, {srd(sV)}, {s.cur} offen {NTV}')
    else:
        r.append(f's_add_u32 {s.t3}, {s.cur}, {4096*j}')
        r.append(f'buffer_load_dwordx4 {VR(vV+4*j, 4)}, {V(vKVoff)}, {srd(sV)}, {s.t3} offen {NTV}')
    return r
def pick_issue():
    A(f'v_mov_b32 {V(vT0)}, 1')
    A('s_mov_b64 exec, 1')
    A(f'ds_add_rtn_u32 {V(vPick)}, {V(vMBa)}, {V(vT0)}')
    A('s_mov_b64 exec, -1')

bt_addr()
A('s_waitcnt vmcnt(0)')
A('s_barrier')
stamp(2)
A(f'ds_read_b32 {V(vBT)}, {V(vT0)}')
q_dma()
if TRIM:
    C('wave 0 holds the last block: rows past the context are not fetched')
    A(f's_lshl_b32 {s.t0}, {s.nblk}, 4')
    A(f's_sub_u32 {s.t0}, {s.clg}, {s.t0}')
    A(f's_lshl_b32 {s.t0}, {s.t0}, 12')
A('s_waitcnt lgkmcnt(0)')
decode_fin()
if TRIM:
    A(f's_sub_u32 {s.t1}, {s.nxt}, {s.hoff}')
    A(f's_add_u32 {s.t1}, {s.t1}, {s.t0}')
    A(f's_cmp_eq_u32 {s.h}, 0')
    A(f's_cselect_b32 s{sK+2}, {s.t1}, {KV_BYTES}')
    A(f's_cselect_b32 s{sV+2}, {s.t1}, {KV_BYTES}')
for j in range(8):
    for x in k_dma(j): A(x)
if TRIM:
    A(f's_mov_b32 s{sK+2}, {KV_BYTES}')

C('off the critical path: budgets, excess and spare lists')
A(f'v_and_b32 {V(vT3)}, {s.k0}, {V(vT5)}')
A(f'v_cmp_ne_u32 vcc, 0, {V(vT3)}')
A(f's_add_u32 {s.t0}, {s.T}, 31')
A(f's_lshr_b32 {s.t0}, {s.t0}, 5')
A(f's_sub_u32 {s.t1}, {s.t0}, 1')
A(f's_min_u32 {s.t1}, {s.t1}, {DELTA}')
A(f's_add_u32 {s.t2}, {s.t0}, {s.t1}')
A(f's_sub_u32 {s.t1}, {s.t0}, {s.t1}')
A(f'v_mov_b32 {V(vT2)}, {s.t1}')
A(f'v_mov_b32 {V(vT3)}, {s.t2}')
A(f'v_cndmask_b32 {V(vT2)}, {V(vT2)}, {V(vT3)}, vcc')
A(f'v_min_u32 {V(vT1)}, {V(vT2)}, {V(vNb)}')
A(f'v_sub_u32 {V(vEx)}, {V(vNb)}, {V(vT1)}')
A(f'v_sub_u32 {V(vSp)}, {V(vT2)}, {V(vT1)}')
A(f'v_lshl_or_b32 {V(vT0)}, {V(vSp)}, 16, {V(vEx)}')
A(f'v_cmp_ne_u32 vcc, 0, {V(vEx)}')
A(f'v_cmp_ne_u32 {T2P}, 0, {V(vSp)}')
for st in steps:
    A('s_nop 1')
    A(st)
A(f's_mov_b32 {s.mex}, vcc_lo')
A(f'v_mov_b32 {V(vCls)}, {s.t2}')
A(f'v_readlane_b32 {s.own}, {V(vT1)}, {s.g}')
A(f'v_readlane_b32 {s.t1}, {V(vSp)}, {s.g}')
A(f'v_and_b32 {V(vEXe)}, 0xffff, {V(vT0)}')
A(f'v_lshrrev_b32 {V(vSPe)}, 16, {V(vT0)}')
A(f's_bfm_b32 {s.t0}, {s.g}, 0')
A(f's_and_b32 {s.t0}, {s.t0}, {s.t2}')
A(f's_bcnt1_i32_b32 {s.rank}, {s.t0}')
A(f'v_readlane_b32 {s.t3}, {V(vEXe)}, 31')
A(f'v_readlane_b32 {s.xe}, {V(vSPe)}, {s.g}')
A(f'v_readlane_b32 {s.exg}, {V(vEx)}, {s.g}')
A(f's_sub_u32 {s.xs}, {s.xe}, {s.t1}')
A(f's_min_u32 {s.xs}, {s.xs}, {s.t3}')
A(f's_min_u32 {s.xe}, {s.xe}, {s.t3}')
A(f's_sub_u32 {s.hc}, {s.xe}, {s.xs}')
A(f'v_cmp_ge_u32 vcc, {s.xs}, {V(vEXe)}')
A(f's_and_b32 {s.t0}, vcc_lo, {s.mex}')
A(f's_bcnt1_i32_b32 {s.rkx0}, {s.t0}')
def rank_of(xs, dst):
    A(f'v_cmp_ge_u32 vcc, {xs}, {V(vSPe)}')
    A(f'v_readfirstlane_b32 {s.t1}, {V(vCls)}')
    A(f's_and_b32 {s.t1}, {s.t1}, vcc_lo')
    A(f's_bcnt1_i32_b32 {dst}, {s.t1}')
def helper_span(sb):
    A(f'v_readlane_b32 {s.t0}, {V(vEXe)}, {sb}')
    A(f'v_readlane_b32 {s.k0}, {V(vEx)}, {sb}')
    A(f's_sub_u32 {s.k0}, {s.t0}, {s.k0}')
    A(f's_sub_u32 {s.t0}, {s.t0}, 1')
    rank_of(s.t0, s.n)
    rank_of(s.k0, s.slot0)
    A(f's_sub_u32 {s.n}, {s.n}, {s.slot0}')
    A(f's_add_u32 {s.n}, {s.n}, 1')
    A(f's_add_u32 {s.slot0}, {s.slot0}, {sb}')
helper_span(s.g)
A(f's_sub_u32 {s.chk}, {s.own}, {8 + CHK}')
A(f's_max_i32 {s.chk}, {s.chk}, 0')
A(f's_add_u32 {s.chk}, {s.chk}, {s.hc}')
A(f's_cmp_eq_u32 {s.exg}, 0')
A(f's_cselect_b32 {s.n}, 0, {s.n}')
A(f's_cselect_b32 {s.pf}, 3, 0')
A(f's_cselect_b32 {s.chk}, 0xffff, {s.chk}')
A(f's_lshl_b32 {s.t0}, {s.h}, 8')
A(f'v_add_u32 {V(vSlOff)}, {s.t0}, {V(vLane4)}')
for r in range(32):
    A(f'v_mov_b32 {V(vAcc+r)}, 0')
A(f'v_mov_b32 {V(vM)}, {f32(-1e30)}')
A(f'v_mov_b32 {V(vL)}, 0')
A(f'v_mov_b32 {V(vRet)}, 0')
A(f'v_mov_b32 {V(vSegB)}, 0')
stamp(3)
A(f's_cmp_lt_u32 {s.h}, {s.own}')
A('s_cbranch_scc1 L_newseg')
C('no own first block for this wave: take one from the list')
pick_issue()
A('s_waitcnt vmcnt(0) lgkmcnt(0)')
decode_pick()
A(f'ds_read_b32 {V(vBT)}, {V(vT0)}')
q_dma()
A('s_waitcnt lgkmcnt(0)')
decode_fin()
for j in range(8):
    for x in k_dma(j): A(x)
A(f's_cmp_eq_u32 {s.nph}, 2')
A('s_cbranch_scc1 L_own_done')
A('s_branch L_newseg')

def merge_halves():
    A(f'v_mov_b32 {V(vT0)}, {V(vL)}')
    A(f'v_mov_b32 {V(vT1)}, {V(vM)}')
    A(f'v_mov_b32 {V(vT2)}, {V(vM)}')
    A('s_nop 0')
    A(f'v_permlane16_swap_b32 {V(vL)}, {V(vT0)}')
    A(f'v_permlane32_swap_b32 {V(vT1)}, {V(vT2)}')
    A(f'v_add_f32 {V(vL)}, {V(vL)}, {V(vT0)}')
    A(f'v_max_f32 {V(vMn)}, {V(vT1)}, {V(vT2)}')
    A(f'v_sub_f32 {V(vT2)}, {V(vM)}, {V(vMn)}')
    A(f'v_mul_f32 {V(vT2)}, {s.c}, {V(vT2)}')
    A(f'v_exp_f32 {V(vT2)}, {V(vT2)}')
    A(f'v_mul_f32 {V(vT4)}, {s.c}, {V(vMn)}')
    A('s_nop 0')
    A(f'v_mul_f32 {V(vL)}, {V(vL)}, {V(vT2)}')
    for e in range(8):
        A(f'v_mul_f32_dpp {V(vAcc+4*e)}, {V(vT2)}, {V(vAcc+4*e)} quad_perm:[0,0,2,2] {DPPF}')
        A(f'v_mul_f32_dpp {V(vAcc+4*e+1)}, {V(vT2)}, {V(vAcc+4*e+1)} quad_perm:[1,1,3,3] {DPPF}')
    A(f'v_mov_b32 {V(vT0)}, {V(vL)}')
    A('s_nop 1')
    A(f'v_permlane32_swap_b32 {V(vL)}, {V(vT0)}')
    for e in range(8):
        A(f'v_permlane32_swap_b32 {V(vAcc+4*e)}, {V(vAcc+4*e+1)}')
    A(f'v_add_f32 {V(vT5)}, {V(vL)}, {V(vT0)}')
    for e in range(8):
        A(f'v_add_f32 {V(vKf+e)}, {V(vAcc+4*e)}, {V(vAcc+4*e+1)}')
    A(f'v_lshlrev_b32 {V(vT0)}, 3, {V(vLane)}')
def lds_record(sbase):
    A(f'v_add_u32 {V(vT1)}, {sbase}, {V(vPoff)}')
    A(f'v_add_u32 {V(vT0)}, {sbase}, {V(vT0)}')
    A(f'ds_write_b128 {V(vT1)}, {VR(vKf,4)}')
    A(f'ds_write_b128 {V(vT1)}, {VR(vKf+4,4)} offset:512')
    A('s_mov_b64 exec, 3')
    A(f'ds_write_b64 {V(vT0)}, {VR(vT4,2)} offset:2048')
    A('s_mov_b64 exec, -1')
def reset_state():
    for e in range(8):
        A(f'v_mov_b32 {V(vAcc+4*e)}, 0')
        A(f'v_mov_b32 {V(vAcc+4*e+1)}, 0')
    A(f'v_mov_b32 {V(vM)}, {f32(-1e30)}')
    A(f'v_mov_b32 {V(vL)}, 0')
def signal(sb, scnt):
    A(f's_lshl_b32 {s.t0}, {sb}, 3')
    A(f's_and_b32 {s.t1}, {s.j}, 4')
    A(f's_add_u32 {s.t0}, {s.t0}, {s.t1}')
    A(f's_and_b32 {s.t1}, {s.j}, 3')
    A(f's_lshl_b32 {s.t1}, {s.t1}, 3')
    A(f's_lshl_b32 {s.t1}, {scnt}, {s.t1}')
    A(f's_lshl_b32 {s.t2}, {scnt}, 8')
    A(f's_or_b32 {s.t2}, {s.t2}, {sb}')
    A(f'v_mov_b32 {V(vT2)}, {s.t0}')
    A(f's_lshl_b64 exec, 1, {s.seg}')
    A(f'v_mov_b32 {V(vSegB)}, {s.t2}')
    A(f'v_mov_b32 {V(vRet)}, {s.t1}')
    A(f'buffer_atomic_add {V(vRet)}, {V(vT2)}, {srd(sDBG)}, 0 offen sc0')
    A('s_mov_b64 exec, -1')
    A(f's_add_u32 {s.seg}, {s.seg}, 1')
def chk_issue():
    A(f's_lshl_b32 {s.t0}, {s.g}, 3')
    A(f's_and_b32 {s.t1}, {s.j}, 4')
    A(f's_add_u32 {s.t0}, {s.t0}, {s.t1}')
    A(f'v_mov_b32 {V(vT2)}, {s.t0}')
    A(f'buffer_load_dword {V(vChk)}, {V(vT2)}, {srd(sDBG)}, 0 offen sc1')
def chk_eval(tag):
    A(f'v_readfirstlane_b32 {s.t0}, {V(vChk)}')
    A(f's_and_b32 {s.t1}, {s.j}, 3')
    A(f's_lshl_b32 {s.t1}, {s.t1}, 3')
    A(f's_lshr_b32 {s.t0}, {s.t0}, {s.t1}')
    A(f's_and_b32 {s.t0}, {s.t0}, 0xff')
    if OPT['forceslow'] == '1':
        A(f's_add_u32 {s.t0}, {s.t0}, 1000')
    A(f's_cmp_lg_u32 {s.t0}, {s.exg}')
    A(f's_cbranch_scc1 L_chkno{tag}')
    A(f'v_mov_b32 {V(vT2)}, 0x10000')
    A(f'ds_or_b32 {V(vMBa)}, {V(vT2)}' + (' offset:4' if tag == 'c' else ''))
    LB(f'L_chkno{tag}')
def rec_addr(sslot, ddata, dstat):
    A(f's_lshl_b32 {dstat}, {sslot}, 3')
    A(f's_add_u32 {dstat}, {dstat}, {s.j}')
    A(f's_lshl_b32 {ddata}, {dstat}, 11')
    A(f's_lshl_b32 {dstat}, {dstat}, 7')
    A(f's_add_u32 {dstat}, {dstat}, {STATS}')
def pf_issue():
    rec_addr(s.slot, s.t2, s.t0)
    A(f's_and_b32 {s.t3}, {s.h}, 4')
    A(f's_lshl_b32 {s.t3}, {s.t3}, 1')
    A(f's_add_u32 {s.t0}, {s.t0}, {s.t3}')
    A(f's_min_u32 {s.t1}, {s.t1}, {NPF}')
    A(f'v_and_b32 {V(vT0)}, 15, {V(vLane)}')
    A(f'v_cmp_gt_u32 vcc, {s.t1}, {V(vT0)}')
    A(f'v_lshlrev_b32 {V(vT0)}, 10, {V(vT0)}')
    A(f'v_mov_b32 {V(vT1)}, {OOB_WS}')
    A('s_nop 0')
    A(f'v_cndmask_b32 {V(vT1)}, {V(vT1)}, {V(vT0)}, vcc')
    A(f'buffer_load_dwordx2 {VR(vYS,2)}, {V(vT1)}, {srd(sWS)}, {s.t0} offen sc1')
    for k in range(NPF):
        A(f's_cmp_gt_u32 {s.t1}, {k}')
        A(f's_cselect_b32 {s.t3}, {s.t2}, {OOB_WS}')
        A(f'buffer_load_dword {V(vY+k)}, {V(vSlOff)}, {srd(sWS)}, {s.t3} offen sc1')
        A(f's_add_u32 {s.t2}, {s.t2}, 16384')
def row_allreduce(op, v):
    for sh in (1, 2, 4, 8):
        A('s_nop 1')
        A(f'v_{op}_f32_dpp {V(v)}, {V(v)}, {V(v)} row_ror:{sh} {DPPF}')

LB('L_deposit')
merge_halves()
A(f's_bfm_b32 {s.t0}, {s.cb}, 0')
A(f's_and_b32 {s.t0}, {s.t0}, {s.mex}')
A(f's_bcnt1_i32_b32 {s.t0}, {s.t0}')
A(f's_sub_u32 {s.k0}, {s.t0}, {s.rkx0}')
A(f's_and_b32 {s.t0}, {s.k0}, {NA-1}')
A(f's_lshl_b32 {s.t1}, {s.t0}, 2')
A(f's_add_u32 {s.t1}, {s.t1}, {LDS_MB + 16}')
A(f'v_mov_b32 {V(vT3)}, {s.t1}')
A(f's_mul_i32 {s.slot}, {s.t0}, {8*REC}')
A(f's_add_u32 {s.slot}, {s.slot}, {LDS_AR}')
LB('L_gen')
A(f'ds_read_b32 {V(vT2)}, {V(vT3)}')
A('s_waitcnt lgkmcnt(0)')
A(f'v_readfirstlane_b32 {s.t0}, {V(vT2)}')
A(f's_lshr_b32 {s.t0}, {s.t0}, 16')
A(f's_cmp_lg_u32 {s.t0}, {s.k0}')
A('s_cbranch_scc1 L_gen')
A(f's_mul_i32 {s.t0}, {s.h}, {REC}')
A(f's_add_u32 {s.t0}, {s.t0}, {s.slot}')
lds_record(s.t0)
A(f's_lshl_b32 {s.t0}, 0x100, {s.h}')
A(f's_add_u32 {s.t0}, {s.t0}, {s.segcnt}')
A(f'v_mov_b32 {V(vT2)}, {s.t0}')
A(f'v_readlane_b32 {s.t1}, {V(vEXe)}, {s.cb}')
A(f'v_readlane_b32 {s.t2}, {V(vEx)}, {s.cb}')
A('s_waitcnt lgkmcnt(0)')
A('s_mov_b64 exec, 1')
A(f'ds_add_rtn_u32 {V(vT1)}, {V(vT3)}, {V(vT2)}')
A('s_mov_b64 exec, -1')
A(f's_sub_u32 {s.t2}, {s.t1}, {s.t2}')
A(f's_max_u32 {s.t2}, {s.t2}, {s.xs}')
A(f's_min_u32 {s.t1}, {s.t1}, {s.xe}')
A(f's_sub_u32 {s.t1}, {s.t1}, {s.t2}')
A(f's_mov_b32 {s.segcnt}, 0')
A('s_waitcnt lgkmcnt(0)')
A(f'v_readfirstlane_b32 {s.t2}, {V(vT1)}')
A(f's_add_u32 {s.t0}, {s.t0}, {s.t2}')
A(f's_and_b32 {s.t2}, {s.t0}, 0xff')
A(f's_cmp_lg_u32 {s.t2}, {s.t1}')
A('s_cbranch_scc1 L_deposited')
if OPT['delayhelp'] == '1':
    A(f's_mov_b32 {s.pendcnt}, 40')
    LB('L_dly')
    A('s_sleep 127')
    A(f's_sub_u32 {s.pendcnt}, {s.pendcnt}, 1')
    A(f's_cmp_lg_u32 {s.pendcnt}, 0')
    A('s_cbranch_scc1 L_dly')
C('merge the deposited records of the waves in mask t0[15:8]')
A(f's_mov_b32 {s.pendcnt}, {s.t1}')
A(f's_mov_b32 {s.pendb}, {s.cb}')
A(f's_bfe_u32 {s.t0}, {s.t0}, 0x80008')
A(f'v_and_b32 {V(vT0)}, 7, {V(vLane)}')
A(f'v_mul_u32_u24 {V(vT0)}, {REC}, {V(vT0)}')
A(f'v_lshrrev_b32 {V(vT1)}, 5, {V(vLane)}')
A(f'v_lshl_add_u32 {V(vT0)}, {V(vT1)}, 3, {V(vT0)}')
A(f'v_add_u32 {V(vT0)}, {s.slot}, {V(vT0)}')
A(f'v_add_u32 {V(vT1)}, {s.slot}, {V(vPoff)}')
A(f'ds_read_b64 {VR(vXS,2)}, {V(vT0)} offset:2048')
for u in range(8):
    A(f'ds_read_b128 {VR(vKf+8*u,4)}, {V(vT1)} offset:{u*REC}')
    A(f'ds_read_b128 {VR(vKf+8*u+4,4)}, {V(vT1)} offset:{u*REC+512}')
A(f'v_and_b32 {V(vT0)}, 15, {V(vLane)}')
A(f'v_lshrrev_b32 {V(vT0)}, {V(vT0)}, {s.t0}')
A(f'v_and_b32 {V(vT0)}, 1, {V(vT0)}')
A(f'v_cmp_ne_u32 vcc, 0, {V(vT0)}')
A(f's_add_u32 {s.t1}, {s.k0}, {NA}')
A(f's_lshl_b32 {s.t1}, {s.t1}, 16')
A(f'v_mov_b32 {V(vT2)}, {s.t1}')
A('s_waitcnt lgkmcnt(0)')
A(f'ds_write_b32 {V(vT3)}, {V(vT2)}')
A(f'v_cndmask_b32 {V(vXS)}, {V(vNegInf)}, {V(vXS)}, vcc')
A(f'v_cndmask_b32 {V(vXS+1)}, 0, {V(vXS+1)}, vcc')
A(f'v_mov_b32 {V(vS)}, {V(vXS)}')
row_allreduce('max', vS)
A(f'v_sub_f32 {V(vWA)}, {V(vXS)}, {V(vS)}')
A(f'v_exp_f32 {V(vWA)}, {V(vWA)}')
for e in range(8):
    A(f'v_mov_b32 {V(vAcc+e)}, 0')
A(f'v_mul_f32 {V(vS+1)}, {V(vWA)}, {V(vXS+1)}')
row_allreduce('add', vS+1)
for u in range(8):
    A(f's_bitcmp0_b32 {s.t0}, {u}')
    A(f's_cbranch_scc1 L_mskip{u}')
    for e in range(8):
        A(f'v_fmac_f32_dpp {V(vAcc+e)}, {V(vWA)}, {V(vKf+8*u+e)} row_newbcast:{u} {DPPF}')
    LB(f'L_mskip{u}')
A(f'v_readlane_b32 {s.t2}, {V(vS)}, 32')
A(f'v_readlane_b32 {s.t3}, {V(vS+1)}, 32')
A(f's_add_u32 {s.slot}, {s.rank}, {s.cb}')
rec_addr(s.slot, s.t1, s.t0)
A(f'v_mov_b32 {V(vS+2)}, {s.t2}')
A(f'v_mov_b32 {V(vS+3)}, {s.t3}')
A(f'buffer_store_dwordx4 {VR(vAcc,4)}, {V(vPoff)}, {srd(sWS)}, {s.t1} offen sc1')
A(f'buffer_store_dwordx4 {VR(vAcc+4,4)}, {V(vPoff)}, {srd(sWS)}, {s.t1} offen offset:512 sc1')
A('s_mov_b64 exec, 0xff')
A(f'buffer_store_dwordx4 {VR(vS,4)}, {V(vQoff)}, {srd(sWS)}, {s.t0} offen sc1')
A('s_mov_b64 exec, -1')
A(f's_add_u32 {s.ex}, {s.ex}, 3')
A('s_nop 0')
LB('L_deposited')
A(f's_cmp_eq_u32 {s.nph}, 1')
A('s_cbranch_scc1 L_fresh')
A(f's_cmp_eq_u32 {s.saved}, 0')
A('s_cbranch_scc1 L_fresh')
C('back to the own sequence')
for e in range(8):
    A(f'v_mov_b32 {V(vAcc+4*e)}, {V(vSave+2*e)}')
    A(f'v_mov_b32 {V(vAcc+4*e+1)}, {V(vSave+2*e+1)}')
A(f'v_mov_b32 {V(vM)}, {V(vSave+16)}')
A(f'v_mov_b32 {V(vL)}, {V(vSave+17)}')
A('s_branch L_after')
LB('L_save')
for e in range(8):
    A(f'v_mov_b32 {V(vSave+2*e)}, {V(vAcc+4*e)}')
    A(f'v_mov_b32 {V(vSave+2*e+1)}, {V(vAcc+4*e+1)}')
A(f'v_mov_b32 {V(vSave+16)}, {V(vM)}')
A(f'v_mov_b32 {V(vSave+17)}, {V(vL)}')
A(f's_mov_b32 {s.saved}, 1')
A(f's_mov_b32 {s.segcnt}, 0')
LB('L_fresh')
reset_state()
LB('L_after')
A(f's_cmp_eq_u32 {s.nph}, 2')
A('s_cbranch_scc1 L_own_done')
LB('L_newseg')
A(f'v_readlane_b32 {s.c}, {V(vSc)}, {s.nseq}')
A(f's_mov_b32 {s.needq}, 1')

LB('L_loop')
A(f's_mov_b32 {s.cur}, {s.nxt}')
A(f's_mov_b32 {s.cb}, {s.nseq}')
A(f's_mov_b32 {s.cblk}, {s.nblk}')
A(f's_mov_b32 {s.cph}, {s.nph}')
A(f's_add_u32 {s.segcnt}, {s.segcnt}, 1')
C('K (and Q) must have landed; the s.ex hand-off operations issued behind them may stay in flight')
A(f's_cmp_eq_u32 {s.ex}, 0')
A('s_cbranch_scc1 L_w0')
A(f's_cmp_ge_u32 {s.ex}, {NPF+1}')
A('s_cbranch_scc1 L_w9')
A(f's_cmp_ge_u32 {s.ex}, 3')
A('s_cbranch_scc1 L_w3')
A('s_waitcnt vmcnt(1)')
A('s_branch L_wdone')
LB('L_w9')
A(f's_waitcnt vmcnt({NPF+1})')
A('s_branch L_wdone')
LB('L_w3')
A('s_waitcnt vmcnt(3)')
A('s_branch L_wdone')
LB('L_w0')
A('s_waitcnt vmcnt(0)')
LB('L_wdone')
A(f's_mov_b32 {s.ex}, 0')
for j in range(8):
    for x in v_load(j): A(x)
if TRIM:
    A(f's_mov_b32 s{sV+2}, {KV_BYTES}')
pick_issue()
A(f's_cmp_eq_u32 {s.needq}, 0')
A('s_cbranch_scc1 L_noq')
for j in range(8):
    A(f'ds_read_b128 {VR(vQ+4*j, 4)}, {V(vQrd)} offset:{64*j}')
A(f's_mov_b32 {s.needq}, 0')
LB('L_noq')
for j in range(8):
    A(f'ds_read_b128 {VR(vKf+4*j, 4)}, {V(vKrd)} offset:{64*j}')
for j in range(8):
    A(f's_waitcnt lgkmcnt({7-j})')
    A(f'v_mfma_f32_16x16x32_bf16 {VR(vS,4)}, {VR(vKf+4*j,4)}, {VR(vQ+4*j,4)}, {VR(vS,4) if j else 0}')
decode_pick()
A(f'ds_read_b32 {V(vBT)}, {V(vT0)}')
C('mask the tail of the last block of the own sequence')
A(f's_lshl_b32 {s.t0}, {s.cblk}, 4')
A(f's_sub_u32 {s.t0}, {s.clg}, {s.t0}')
A(f's_cmp_lg_u32 {s.cph}, 0')
A('s_cbranch_scc1 L_nomask')
A(f's_cmp_ge_u32 {s.t0}, 16')
A('s_cbranch_scc1 L_nomask')
for i in range(4):
    A(f'v_cmp_gt_i32 vcc, {s.t0}, {V(vTok)}')
    A(f's_sub_u32 {s.t0}, {s.t0}, 1')
    A('s_nop 0')
    A(f'v_cndmask_b32 {V(vS+i)}, {V(vNegInf)}, {V(vS+i)}, vcc')
LB('L_nomask')
A(f'v_max3_f32 {V(vT0)}, {V(vS)}, {V(vS+1)}, {V(vS+2)}')
A(f'v_max_f32 {V(vT0)}, {V(vT0)}, {V(vS+3)}')
A(f'v_mov_b32 {V(vT1)}, {V(vT0)}')
A('s_nop 1')
A(f'v_permlane16_swap_b32 {V(vT0)}, {V(vT1)}')
A(f'v_max3_f32 {V(vMn)}, {V(vT0)}, {V(vT1)}, {V(vM)}')
A(f'v_cmp_gt_f32 vcc, {V(vMn)}, {V(vM)}')
A('s_cbranch_vccz L_norescale')
A(f'v_sub_f32 {V(vT2)}, {V(vM)}, {V(vMn)}')
A(f'v_mul_f32 {V(vT2)}, {s.c}, {V(vT2)}')
A(f'v_exp_f32 {V(vT2)}, {V(vT2)}')
A(f'v_mov_b32 {V(vM)}, {V(vMn)}')
A('s_nop 0')
A(f'v_mul_f32 {V(vL)}, {V(vL)}, {V(vT2)}')
for e in range(8):
    A(f'v_mul_f32_dpp {V(vAcc+4*e)}, {V(vT2)}, {V(vAcc+4*e)} quad_perm:[0,0,2,2] {DPPF}')
    A(f'v_mul_f32_dpp {V(vAcc+4*e+1)}, {V(vT2)}, {V(vAcc+4*e+1)} quad_perm:[1,1,3,3] {DPPF}')
LB('L_norescale')
A(f'v_mul_f32 {V(vT0)}, {s.c}, {V(vM)}')
for i in range(4):
    A(f'v_fma_f32 {V(vS+i)}, {V(vS+i)}, {s.c}, -{V(vT0)}')
for i in range(4):
    A(f'v_exp_f32 {V(vS+i)}, {V(vS+i)}')
A('s_waitcnt lgkmcnt(0)')
decode_fin()
A(f'v_add_f32 {V(vT0)}, {V(vS)}, {V(vS+1)}')
A(f'v_add_f32 {V(vT1)}, {V(vS+2)}, {V(vS+3)}')
A(f'v_cvt_pk_bf16_f32 {V(vPk)}, {V(vS)}, {V(vS+1)}')
A(f'v_cvt_pk_bf16_f32 {V(vPk+1)}, {V(vS+2)}, {V(vS+3)}')
A(f'v_add_f32 {V(vT0)}, {V(vT0)}, {V(vT1)}')
A(f'v_add_f32 {V(vL)}, {V(vL)}, {V(vT0)}')
C('segment change ahead: s.i = 1; fetch its Q')
A(f's_cmp_lg_u32 {s.nseq}, {s.cb}')
A(f's_cselect_b32 {s.i}, 1, 0')
A(f's_cmp_lg_u32 {s.nph}, {s.cph}')
A(f's_cselect_b32 {s.i}, 1, {s.i}')
A('s_waitcnt vmcnt(0)')
A(f's_cmp_eq_u32 {s.i}, 0')
A('s_cbranch_scc1 L_sameseg')
q_dma()
LB('L_sameseg')
for j in range(8):
    for x in k_dma(j): A(x)
def handoffs(tag):
    A(f's_cmp_eq_u32 {s.pendcnt}, 0')
    A(f's_cbranch_scc1 L_nopend{tag}')
    signal(s.pendb, s.pendcnt)
    A(f's_mov_b32 {s.pendcnt}, 0')
    A(f's_add_u32 {s.ex}, {s.ex}, 1')
    LB(f'L_nopend{tag}')
    A(f's_cmp_lg_u32 {s.chkpend}, 1')
    A(f's_cbranch_scc1 L_nochk{tag}')
    chk_eval(tag)
    A(f's_mov_b32 {s.chkpend}, 0')
    LB(f'L_nochk{tag}')
handoffs('a')
A(f's_cmp_lg_u32 {s.chkpend}, 2')
A('s_cbranch_scc1 L_nochk2')
chk_issue()
A(f's_mov_b32 {s.chkpend}, 1')
A(f's_add_u32 {s.ex}, {s.ex}, 1')
LB('L_nochk2')
A(f's_cmp_lg_u32 {s.pf}, 1')
A('s_cbranch_scc1 L_nopf')
A(f's_mov_b32 {s.slot}, {s.slot0}')
A(f's_mov_b32 {s.t1}, {s.n}')
pf_issue()
A(f's_mov_b32 {s.pf}, 3')
A(f's_add_u32 {s.ex}, {s.ex}, {NPF+1}')
LB('L_nopf')
def perms(g):
    r = []
    for rr in range(4):
        for q in range(2):
            e = 2*rr + q
            sel = s.sel1 if q else s.sel0
            d = vKf + 16*g + 2*e
            r.append(f'v_perm_b32 {V(d)}, {V(vV+4*(4*g+1)+rr)}, {V(vV+4*(4*g)+rr)}, {sel}')
            r.append(f'v_perm_b32 {V(d+1)}, {V(vV+4*(4*g+3)+rr)}, {V(vV+4*(4*g+2)+rr)}, {sel}')
    return r
def pv(g, e):
    return f'v_mfma_f32_4x4x4_16b_bf16 {VR(vAcc+4*e,4)}, {VR(vPk,2)}, {VR(vKf+16*g+2*e,2)}, {VR(vAcc+4*e,4)} cbsz:3 abid:{4*g}'
for x in perms(0): A(x)
p1 = perms(1)
for e in range(8):
    A(pv(0, e))
    A(p1[2*e]); A(p1[2*e+1])
A('s_nop 0')
for e in range(8):
    A(pv(1, e))
A(f's_cmp_eq_u32 {s.i}, 0')
A('s_cbranch_scc1 L_loop')
A(f's_cmp_lg_u32 {s.cph}, 0')
A('s_cbranch_scc1 L_deposit')
A(f's_cmp_eq_u32 {s.nph}, 1')
A('s_nop 0')
A('s_cbranch_scc1 L_save')

LB('L_own_done')
A(f'v_readlane_b32 {s.c}, {V(vSc)}, {s.g}')
stamp(4)
A('s_nop 1')
merge_halves()
A('s_waitcnt vmcnt(0)')
lds_record(s.ldsK)
handoffs('b')
C('LDS addresses of the final merge')
A(f'v_and_b32 {V(vT0)}, 7, {V(vLane)}')
A(f'v_mul_u32_u24 {V(vT0)}, {KSLOT}, {V(vT0)}')
A(f's_and_b32 {s.t0}, {s.h}, 4')
A(f's_lshl_b32 {s.t0}, {s.t0}, 1')
A(f's_add_u32 {s.t0}, {s.t0}, {LDS_K + 2048}')
A(f'v_add_u32 {V(vT0)}, {s.t0}, {V(vT0)}')
A(f'v_add_u32 {V(vT1)}, {LDS_K}, {V(vSlOff)}')
A('s_waitcnt lgkmcnt(0)')
A('s_barrier')
stamp(5)
A(f'ds_read_b32 {V(vPick)}, {V(vMBa)}')
A(f'ds_read_b64 {VR(vXS,2)}, {V(vT0)}')
for k in range(8):
    A(f'ds_read_b32 {V(vKf+k)}, {V(vT1)} offset:{k*KSLOT}')
A(f's_cmp_eq_u32 {s.exg}, 0')
A('s_cbranch_scc1 L_fast')
A('s_waitcnt lgkmcnt(9)')
A(f'v_readfirstlane_b32 {s.t0}, {V(vPick)}')
A(f's_lshr_b32 {s.t0}, {s.t0}, 16')
A(f's_cmp_lg_u32 {s.t0}, 0')
A('s_cbranch_scc1 L_fast')
C('not seen complete yet: look once more')
A(f's_cmp_lg_u32 {s.h}, 0')
A('s_cbranch_scc1 L_rechk')
chk_issue()
A('s_waitcnt vmcnt(0)')
chk_eval('c')
A('s_waitcnt lgkmcnt(0)')
LB('L_rechk')
A('s_barrier')
A(f'ds_read_b32 {V(vPick)}, {V(vMBa)} offset:4')
A('s_waitcnt lgkmcnt(0)')
A(f'v_readfirstlane_b32 {s.t0}, {V(vPick)}')
A(f's_lshr_b32 {s.t0}, {s.t0}, 16')
A(f's_cmp_lg_u32 {s.t0}, 0')
A('s_cbranch_scc1 L_fast')
A(f's_mov_b32 {s.n}, 0')
A(f's_mov_b32 {s.pf}, 4')
LB('L_fast')
A(f's_mov_b32 {s.slot}, {s.slot0}')
A(f's_mov_b32 {s.k0}, 0')
A(f's_and_b32 {s.t0}, {s.pf}, 6')
A(f's_cmp_lg_u32 {s.t0}, 0')
A('s_cbranch_scc1 L_havepf')
A(f's_mov_b32 {s.t1}, {s.n}')
pf_issue()
LB('L_havepf')
C('first pass: 8 LDS partials and up to NPF helper records')
A(f's_min_u32 {s.t1}, {s.n}, {NPF}')
A(f'v_and_b32 {V(vT0)}, 15, {V(vLane)}')
A(f'v_cmp_gt_u32 vcc, {s.t1}, {V(vT0)}')
A(f'v_cmp_gt_u32 {T2P}, 8, {V(vT0)}')
A('s_waitcnt vmcnt(0) lgkmcnt(0)')
A(f'v_cndmask_b32 {V(vYS)}, {V(vNegInf)}, {V(vYS)}, vcc')
A(f'v_cndmask_b32 {V(vYS+1)}, 0, {V(vYS+1)}, vcc')
A(f'v_cndmask_b32 {V(vXS)}, {V(vNegInf)}, {V(vXS)}, {T2P}')
A(f'v_max_f32 {V(vM)}, {V(vYS)}, {V(vXS)}')
row_allreduce('max', vM)
A(f'v_sub_f32 {V(vWA)}, {V(vXS)}, {V(vM)}')
A(f'v_sub_f32 {V(vWB)}, {V(vYS)}, {V(vM)}')
A(f'v_exp_f32 {V(vWA)}, {V(vWA)}')
A(f'v_exp_f32 {V(vWB)}, {V(vWB)}')
A(f'v_mov_b32 {V(vT3)}, 0')
A(f'v_mul_f32 {V(vL)}, {V(vWA)}, {V(vXS+1)}')
A(f'v_fmac_f32 {V(vL)}, {V(vWB)}, {V(vYS+1)}')
for k in range(8):
    A(f'v_fmac_f32_dpp {V(vT3)}, {V(vWA)}, {V(vKf+k)} row_newbcast:{k} {DPPF}')
for sh in (1, 2, 4, 8):
    A(f'v_add_f32_dpp {V(vL)}, {V(vL)}, {V(vL)} row_ror:{sh} {DPPF}')
    A('s_nop 1')
A(f's_cmp_eq_u32 {s.n}, 0')
A('s_cbranch_scc1 L_merged')
for k in range(NPF):
    A(f'v_fmac_f32_dpp {V(vT3)}, {V(vWB)}, {V(vY+k)} row_newbcast:{k} {DPPF}')
LB('L_more')
A(f's_add_u32 {s.k0}, {s.k0}, {NPF}')
A(f's_cmp_ge_u32 {s.k0}, {s.n}')
A('s_cbranch_scc1 L_merged')
C('more helper records: further passes')
A(f's_add_u32 {s.slot}, {s.slot}, {NPF}')
A(f's_sub_u32 {s.t1}, {s.n}, {s.k0}')
pf_issue()
A('s_waitcnt vmcnt(0)')
A(f'v_cndmask_b32 {V(vYS)}, {V(vNegInf)}, {V(vYS)}, vcc')
A(f'v_max_f32 {V(vT0)}, {V(vYS)}, {V(vM)}')
row_allreduce('max', vT0)
A(f'v_sub_f32 {V(vWB)}, {V(vYS)}, {V(vT0)}')
A(f'v_sub_f32 {V(vT1)}, {V(vM)}, {V(vT0)}')
A(f'v_exp_f32 {V(vWB)}, {V(vWB)}')
A(f'v_exp_f32 {V(vT1)}, {V(vT1)}')
A(f'v_mov_b32 {V(vM)}, {V(vT0)}')
A(f'v_mul_f32 {V(vT2)}, {V(vWB)}, {V(vYS+1)}')
row_allreduce('add', vT2)
A(f'v_fma_f32 {V(vL)}, {V(vL)}, {V(vT1)}, {V(vT2)}')
A(f'v_mul_f32 {V(vT3)}, {V(vT3)}, {V(vT1)}')
for k in range(NPF):
    A(f'v_fmac_f32_dpp {V(vT3)}, {V(vWB)}, {V(vY+k)} row_newbcast:{k} {DPPF}')
A('s_branch L_more')
LB('L_merged')
A(f's_cmp_eq_u32 {s.pf}, 4')
A('s_cbranch_scc1 L_slow')
A(f'v_rcp_f32 {V(vT0)}, {V(vL)}')
A(f's_lshl_b32 {s.t0}, {s.g}, 3')
A(f's_add_u32 {s.t0}, {s.t0}, {s.j}')
A(f's_lshl_b32 {s.t0}, {s.t0}, 10')
A(f'v_bfe_u32 {V(vT1)}, {V(vSlOff)}, 4, 5')
A(f'v_lshlrev_b32 {V(vT1)}, 4, {V(vT1)}')
A(f'v_bfe_u32 {V(vT2)}, {V(vSlOff)}, 2, 2')
A(f'v_lshl_add_u32 {V(vT1)}, {V(vT2)}, 1, {V(vT1)}')
A(f's_bfe_u32 {s.t1}, {s.h}, 0x10001')
A(f's_lshl_b32 {s.t1}, {s.t1}, 3')
A(f's_add_u32 {s.t0}, {s.t0}, {s.t1}')
A(f's_and_b32 {s.t1}, {s.h}, 4')
A(f's_lshl_b32 {s.t1}, {s.t1}, 7')
A(f's_add_u32 {s.t0}, {s.t0}, {s.t1}')
A(f'v_mul_f32 {V(vT3)}, {V(vT3)}, {V(vT0)}')
A(f'v_cvt_pk_bf16_f32 {V(vT3)}, {V(vT3)}, {V(vT3)}')
A(f'buffer_store_short {V(vT3)}, {V(vT1)}, {srd(sOUT)}, {s.t0} offen')
A('s_branch L_tail')
LB('L_slow')
C('helpers still at work: publish the merged own partial and arrive like a helper')
A(f's_add_u32 {s.slot}, {s.g}, {OWNSLOT}')
rec_addr(s.slot, s.t1, s.t0)
A(f's_and_b32 {s.t2}, {s.h}, 4')
A(f's_lshl_b32 {s.t2}, {s.t2}, 1')
A(f's_add_u32 {s.t0}, {s.t0}, {s.t2}')
A(f'v_mov_b32 {V(vT4)}, {V(vM)}')
A(f'v_mov_b32 {V(vT5)}, {V(vL)}')
A(f'v_mov_b32 {V(vT0)}, 0')
A(f'buffer_store_dword {V(vT3)}, {V(vSlOff)}, {srd(sWS)}, {s.t1} offen sc1')
A('s_mov_b64 exec, 1')
A(f'buffer_store_dwordx2 {VR(vT4,2)}, {V(vT0)}, {srd(sWS)}, {s.t0} offen sc1')
A('s_mov_b64 exec, -1')
A('s_waitcnt vmcnt(0)')
A('s_barrier')
A(f's_cmp_lg_u32 {s.h}, 0')
A('s_cbranch_scc1 L_tail')
A(f's_mov_b32 {s.i}, 128')
signal(s.g, s.i)

LB('L_tail')
stamp(6)
A(f's_cmp_eq_u32 {s.seg}, 0')
A('s_cbranch_scc1 L_fin')
A(f's_mov_b32 {s.i}, 0')
A('s_waitcnt vmcnt(0)')
LB('L_chk')
A(f's_cmp_ge_u32 {s.i}, {s.seg}')
A('s_cbranch_scc1 L_fin')
A(f'v_readlane_b32 {s.t3}, {V(vSegB)}, {s.i}')
A(f'v_readlane_b32 {s.t0}, {V(vRet)}, {s.i}')
A(f's_add_u32 {s.i}, {s.i}, 1')
A(f's_and_b32 {s.cb}, {s.t3}, 31')
A(f'v_readlane_b32 {s.t2}, {V(vEx)}, {s.cb}')
A(f's_and_b32 {s.t1}, {s.j}, 3')
A(f's_lshl_b32 {s.t1}, {s.t1}, 3')
A(f's_lshr_b32 {s.t0}, {s.t0}, {s.t1}')
A(f's_and_b32 {s.t0}, {s.t0}, 0xff')
A(f's_bfe_u32 {s.t3}, {s.t3}, 0x80008')
A(f's_add_u32 {s.t0}, {s.t0}, {s.t3}')
A(f's_add_u32 {s.t2}, {s.t2}, 128')
A(f's_cmp_lg_u32 {s.t0}, {s.t2}')
A('s_cbranch_scc1 L_chk')
helper_span(s.cb)
cM, cL = vM, vL
A(f'v_mov_b32 {V(cM)}, {V(vNegInf)}')
A(f'v_mov_b32 {V(cL)}, 0')
for e in range(8):
    A(f'v_mov_b32 {V(cAcc+e)}, 0')
A(f's_add_u32 {s.slot}, {s.cb}, {OWNSLOT}')
A(f's_mov_b32 {s.nblk}, 1')
A(f's_mov_b32 {s.k0}, 0')
LB('L_cchunk')
rec_addr(s.slot, s.t2, s.t0)
A(f'v_and_b32 {V(vT0)}, 15, {V(vLane)}')
A(f'v_cmp_gt_u32 vcc, {s.nblk}, {V(vT0)}')
A(f'v_mov_b32 {V(vT1)}, {OOB_WS}')
A('s_nop 0')
A(f'v_cndmask_b32 {V(vT1)}, {V(vT1)}, {V(vStOff)}, vcc')
A(f'buffer_load_dwordx2 {VR(cSt,2)}, {V(vT1)}, {srd(sWS)}, {s.t0} offen sc1')
for k in range(CH):
    A(f's_cmp_gt_u32 {s.nblk}, {k}')
    A(f's_cselect_b32 {s.t3}, {s.t2}, {OOB_WS}')
    A(f'buffer_load_dwordx4 {VR(cD+8*k,4)}, {V(vPoff)}, {srd(sWS)}, {s.t3} offen sc1')
    A(f'buffer_load_dwordx4 {VR(cD+8*k+4,4)}, {V(vPoff)}, {srd(sWS)}, {s.t3} offen offset:512 sc1')
    A(f's_add_u32 {s.t2}, {s.t2}, 16384')
A(f's_waitcnt vmcnt({2*CH})')
A(f'v_cndmask_b32 {V(cSt)}, {V(vNegInf)}, {V(cSt)}, vcc')
A(f'v_max_f32 {V(vT0)}, {V(cSt)}, {V(cM)}')
row_allreduce('max', vT0)
A(f'v_sub_f32 {V(cW)}, {V(cSt)}, {V(vT0)}')
A(f'v_sub_f32 {V(vT1)}, {V(cM)}, {V(vT0)}')
A(f'v_exp_f32 {V(cW)}, {V(cW)}')
A(f'v_exp_f32 {V(vT1)}, {V(vT1)}')
A(f'v_mov_b32 {V(cM)}, {V(vT0)}')
A(f'v_mul_f32 {V(vT2)}, {V(cW)}, {V(cSt+1)}')
row_allreduce('add', vT2)
A(f'v_fma_f32 {V(cL)}, {V(cL)}, {V(vT1)}, {V(vT2)}')
for e in range(8):
    A(f'v_mul_f32 {V(cAcc+e)}, {V(cAcc+e)}, {V(vT1)}')
for k in range(CH):
    A(f's_waitcnt vmcnt({2*(CH-1-k)})')
    for e in range(8):
        A(f'v_fmac_f32_dpp {V(cAcc+e)}, {V(cW)}, {V(cD+8*k+e)} row_newbcast:{k} {DPPF}')
A(f's_add_u32 {s.slot}, {s.slot0}, {s.k0}')
A(f's_sub_u32 {s.nblk}, {s.n}, {s.k0}')
A(f's_min_u32 {s.nblk}, {s.nblk}, {CH}')
A(f's_mov_b32 {s.t0}, {s.k0}')
A(f's_add_u32 {s.k0}, {s.k0}, {CH}')
A(f's_cmp_lt_u32 {s.t0}, {s.n}')
A('s_cbranch_scc1 L_cchunk')
A(f'v_rcp_f32 {V(vT0)}, {V(cL)}')
A(f's_lshl_b32 {s.t0}, {s.cb}, 13')
A(f's_lshl_b32 {s.t1}, {s.j}, 10')
A(f's_add_u32 {s.t0}, {s.t0}, {s.t1}')
for e in range(8):
    A(f'v_mul_f32 {V(cAcc+e)}, {V(cAcc+e)}, {V(vT0)}')
for e in range(4):
    A(f'v_cvt_pk_bf16_f32 {V(vS+e)}, {V(cAcc+2*e)}, {V(cAcc+2*e+1)}')
A(f'buffer_store_dwordx4 {VR(vS,4)}, {V(vOutOff)}, {srd(sOUT)}, {s.t0} offen')
A('s_branch L_chk')
LB('L_fin')
if STAMPS:
    A('s_waitcnt vmcnt(0)')
    stamp(7)
    stamp_flush()
LB('L_end')
A('s_endpgm')
L.append('.section .rodata,"a"')
L.append('.p2align 6')
L.append(f'.amdhsa_kernel {KN}')
L.append(f'  .amdhsa_next_free_vgpr {NVGPR}')
L.append('  .amdhsa_next_free_sgpr 102')
L.append(f'  .amdhsa_accum_offset {(NVGPR+3)//4*4}')
L.append('  .amdhsa_group_segment_fixed_size 0')
L.append('  .amdhsa_kernarg_size 64')
L.append('  .amdhsa_user_sgpr_count 2')
L.append('  .amdhsa_user_sgpr_kernarg_segment_ptr 1')
L.append('  .amdhsa_system_sgpr_workgroup_id_x 1')
L.append('.end_amdhsa_kernel')
open(out, 'w').write('\n'.join(x for x in L if x is not None) + '\n')
print('wrote', out, 'lds', LDS_TOTAL, 'sgpr top', idx)
```

```python
import sys, struct
out = sys.argv[1] if len(sys.argv) > 1 else 'standalone__paged_block_table_kv_pagedattention__sampling.s'
OPT = dict(nt='nt', stamps='0', chk='16', forceslow='0', delta='5', trim='1', delayhelp='0', ntk='', ntv='')
for a in sys.argv[2:]:
    k, v = a.split('='); OPT[k] = v
NT = OPT['nt'].replace('+', ' ')
if NT == 'none': NT = ''
def pol(x):
    x = OPT[x].replace('+', ' ')
    return NT if x == '' else ('' if x == 'none' else x)
NTK = pol('ntk'); NTV = pol('ntv')
STAMPS = int(OPT['stamps'])
TRIM = int(OPT['trim'])
KN = 'standalone__paged_block_table_kv_pagedattention__sampling_kernel'
L = []
def A(s): L.append('    ' + s)
def LB(s): L.append(s + ':')
def C(s): L.append('    ; ' + s)
def f32(x): return '0x%08x' % struct.unpack('<I', struct.pack('<f', x))[0]

NWG = 256
KV_BYTES = 4100 * 65536
WS_BYTES = 1074790400
LDS_K = 16384
KSLOT = 8448
LDS_Q = LDS_K + 8 * KSLOT
LDS_MB = LDS_Q + 8 * 1024
LDS_AR = LDS_MB + 64
REC = 2080
NA = 4
LDS_TOTAL = LDS_AR + NA * 8 * REC
assert LDS_TOTAL <= 163840
STATS = 0x800000
OWNSLOT = 128
OOB_KV = 0x20000000
OOB_WS = 0x60000000
SCALE = 1.4426950408889634 / 16.0
CHK = int(OPT['chk'])
DELTA = int(OPT['delta'])
NPF = 8

sK, sV, sQ, sWS, sDBG, sOUT, sBT, sCL = 4, 8, 12, 16, 20, 24, 28, 32
def srd(b): return f's[{b}:{b+3}]'
KA = 36
names = '''h g j ccl ug cur cb cblk cph c nxt nseq nblk nph segcnt pendb pendcnt seg needq pf chk chkpend
t0 t1 t2 t3 mex mexh msp msph n ldsK ldsQ nhoff sel0 sel1 k0 i slot ex saved nlim'''.split()
late = 'xs xe hc own exg slot0 rank rkx0'.split()
R = {}
idx = 52
for nme in names:
    R[nme] = idx; idx += 1
for q, nme in enumerate(late):
    R[nme] = 28 + q
assert idx <= 100, idx
assert R['mex'] % 2 == 0 and R['msp'] % 2 == 0
class _S:
    def __getattr__(self, k): return f's{R[k]}'
s = _S()
assert R['t0'] % 2 == 0 and R['t2'] % 2 == 0, (R['t0'], R['t2'])
T2P = f"s[{R['t2']}:{R['t2']+1}]"
T0P = f"s[{R['t0']}:{R['t0']+1}]"
MEX = f"s[{R['mex']}:{R['mex']+1}]"
MSP = f"s[{R['msp']}:{R['msp']+1}]"
s_stamp = 36
vLane, vKVoff, vKrd, vQrd, vQoff, vTok, vPoff, vLane4 = 0, 1, 2, 3, 4, 5, 6, 7
vNb, vCl, vSc, vEx, vEXe, vSp, vSPe, vCls = 8, 9, 10, 11, 12, 13, 14, 15
vSegB, vM, vL, vNegInf, vT0, vT1, vT2, vT3 = 16, 17, 18, 19, 20, 21, 22, 23
vS = 24
vPk = 28
vPick, vMn = 30, 31
vOutOff, vStOff, vT4, vT5 = 32, 33, 34, 35
vRet, vChk, vBT, vMBa = 36, 37, 38, 39
vQ = 40
vKf = 72
vV = 104
vAcc = 136
vY = 168
vYS = 176
vSlOff, vWA, vWB = 178, 179, 180
vXS = 182
vSave = 184
NVGPR = 202
CH = 15
cD = 40; cAcc = 160; cSt = 24; cW = vT4
def V(x): return f'v{x}'
def VR(x, n): return f'v[{x}:{x+n-1}]'
DPPF = 'row_mask:0xf bank_mask:0xf'

def stamp(i):
    if STAMPS:
        A('s_memrealtime s[100:101]')
        A('s_waitcnt lgkmcnt(0)')
        A(f's_mov_b32 s{s_stamp+i}, s100')
def stamp_flush():
    if STAMPS:
        A('s_lshl_b32 s100, s2, 3')
        A(f's_add_u32 s100, s100, {s.h}')
        A('s_lshl_b32 s100, s100, 6')
        A('s_add_u32 s100, s100, 0x2000000')
        for i in range(8):
            A(f'v_mov_b32 v{40+i}, s{s_stamp+i}')
        A('v_mov_b32 v48, 0')
        A('s_mov_b64 exec, 1')
        A(f'buffer_store_dwordx4 v[40:43], v48, {srd(sWS)}, s100 offen')
        A(f'buffer_store_dwordx4 v[44:47], v48, {srd(sWS)}, s100 offen offset:16')
        A('s_mov_b64 exec, -1')

hdr = open('standalone__paged_block_table_kv_pagedattention__sampling.s.ref').read().split('\n')
for line in hdr:
    if line.startswith('; @launch'):
        L.append(f'; @launch grid=({NWG},1,1) block=(512,1,1) lds={LDS_TOTAL}')
        break
    L.append(line)
L.append('.amdgcn_target "amdgcn-amd-amdhsa--gfx950"')
L.append('.text')
L.append(f'.globl {KN}')
L.append('.p2align 8')
L.append(f'.type {KN},@function')
LB(KN)
A(f's_cmp_ge_u32 s2, {NWG}')
A('s_cbranch_scc1 L_end')
if STAMPS:
    A('s_memrealtime s[100:101]')
A(f's_load_dwordx16 s[{KA}:{KA+15}], s[0:1], 0')
A(f'v_lshrrev_b32 {V(vT0)}, 6, v0')
A(f'v_and_b32 {V(vLane)}, 63, v0')
A(f'v_readfirstlane_b32 {s.h}, {V(vT0)}')
C('lane constants')
A(f'v_lshrrev_b32 {V(vT0)}, 5, {V(vLane)}')
A(f'v_and_b32 {V(vT1)}, 31, {V(vLane)}')
A(f'v_lshlrev_b32 {V(vT2)}, 4, {V(vT1)}')
A(f'v_lshl_add_u32 {V(vKVoff)}, {V(vT0)}, 15, {V(vT2)}')
A(f'v_lshl_add_u32 {V(vOutOff)}, {V(vT0)}, 9, {V(vT2)}')
A(f'v_lshl_add_u32 {V(vPoff)}, {V(vT0)}, 10, {V(vT2)}')
A(f'v_and_b32 {V(vT2)}, 15, {V(vLane)}')
A(f'v_lshlrev_b32 {V(vT2)}, 9, {V(vT2)}')
A(f'v_lshl_add_u32 {V(vStOff)}, {V(vT0)}, 3, {V(vT2)}')
A(f'v_lshlrev_b32 {V(vQoff)}, 4, {V(vLane)}')
A(f'v_lshlrev_b32 {V(vLane4)}, 2, {V(vLane)}')
A(f'v_lshrrev_b32 {V(vT0)}, 4, {V(vLane)}')
A(f'v_lshlrev_b32 {V(vTok)}, 2, {V(vT0)}')
A(f'v_lshlrev_b32 {V(vT2)}, 4, {V(vT0)}')
A(f'v_bfe_u32 {V(vT1)}, {V(vLane)}, 3, 1')
A(f'v_lshl_add_u32 {V(vT3)}, {V(vT1)}, 9, {V(vT2)}')
A(f'v_and_b32 {V(vT1)}, 7, {V(vLane)}')
A(f'v_mul_u32_u24 {V(vT1)}, 1056, {V(vT1)}')
A(f's_mul_i32 {s.ldsK}, {s.h}, {KSLOT}')
A(f's_add_u32 {s.ldsK}, {s.ldsK}, {LDS_K}')
A(f's_lshl_b32 {s.ldsQ}, {s.h}, 10')
A(f's_add_u32 {s.ldsQ}, {s.ldsQ}, {LDS_Q}')
A(f'v_add3_u32 {V(vKrd)}, {V(vT3)}, {V(vT1)}, {s.ldsK}')
A(f'v_and_b32 {V(vT1)}, 1, {V(vLane)}')
A(f'v_lshl_add_u32 {V(vT2)}, {V(vT1)}, 9, {V(vT2)}')
A(f'v_add_u32 {V(vQrd)}, {s.ldsQ}, {V(vT2)}')
A(f'v_mov_b32 {V(vNegInf)}, 0xff800000')
A(f's_mov_b32 {s.sel0}, 0x05040100')
A(f's_mov_b32 {s.sel1}, 0x07060302')
A(f's_lshr_b32 {s.g}, s2, 3')
A(f's_and_b32 {s.j}, s2, 7')
A(f's_lshl_b32 {s.nhoff}, {s.j}, 9')
A(f's_and_b32 {s.ug}, {s.j}, 1')
A(f's_lshl_b32 {s.ug}, {s.ug}, 5')
A(f's_add_u32 {s.ug}, {s.ug}, {s.g}')
A(f's_lshl_b32 {s.t1}, {s.g}, 7')
A(f's_add_u32 {s.t1}, {s.t1}, {s.h}')
A(f's_lshl_b32 {s.t1}, {s.t1}, 2')
for z in ('seg', 'pendcnt', 'chkpend', 'segcnt', 'ex', 'saved'):
    A(f's_mov_b32 {getattr(s, z)}, 0')
C('LDS words: 0 pick counter + flag, 1 re-check flag, 4..7 deposit areas (generation tag in bits 16+)')
A(f'v_mov_b32 {V(vMBa)}, {LDS_MB}')
A(f'v_and_b32 {V(vT3)}, 124, {V(vLane4)}')
A(f'v_add_u32 {V(vT0)}, -4, {V(vLane)}')
A(f'v_max_i32 {V(vT0)}, 0, {V(vT0)}')
A(f'v_lshlrev_b32 {V(vT0)}, 16, {V(vT0)}')
A(f'v_add_u32 {V(vT1)}, {LDS_MB}, {V(vLane4)}')
A(f's_lshl_b32 {s.t0}, {s.h}, 11')
A('s_mov_b64 exec, 0xff')
A(f'ds_write_b32 {V(vT1)}, {V(vT0)}')
A('s_mov_b64 exec, -1')
A('s_waitcnt lgkmcnt(0)')
def mksrd(b, ka, nbytes):
    A(f's_mov_b32 s{b}, s{KA+ka}')
    A(f's_and_b32 s{b+1}, s{KA+ka+1}, 0xffff')
    A(f's_mov_b32 s{b+2}, {nbytes}')
    A(f's_mov_b32 s{b+3}, 0x20000')
C('first block of this wave: block <wave> of the own sequence (dropped later if it is not an own block)')
A(f's_load_dword {s.nxt}, s[{KA+6}:{KA+7}], {s.t1}')
mksrd(sCL, 8, 128)
mksrd(sBT, 6, 16384)
A(f'buffer_load_dword {V(vCl)}, {V(vT3)}, {srd(sCL)}, 0 offen')
A(f's_mov_b32 m0, {s.t0}')
mksrd(sK, 2, KV_BYTES)
A(f'buffer_load_dwordx4 {V(vQoff)}, {srd(sBT)}, {s.t0} offen lds')
A(f'buffer_load_dwordx4 {V(vQoff)}, {srd(sBT)}, {s.t0} offen offset:1024 lds')
mksrd(sQ, 0, 32 * 16 * 512)
mksrd(sV, 4, KV_BYTES)
mksrd(sWS, 14, WS_BYTES)
mksrd(sDBG, 12, 256)
mksrd(sOUT, 10, 32 * 16 * 512)
A(f's_mov_b32 {s.nseq}, {s.ug}')
A(f's_mov_b32 {s.nblk}, {s.h}')
A(f's_mov_b32 {s.nph}, 0')
A(f's_mov_b32 {s.nlim}, {KV_BYTES}')
if STAMPS:
    A(f's_mov_b32 s{s_stamp}, s100')

def bt_addr():
    A(f's_and_b32 {s.t0}, {s.nseq}, 31')
    A(f's_lshl_b32 {s.t0}, {s.t0}, 7')
    A(f's_add_u32 {s.t0}, {s.t0}, {s.nblk}')
    A(f's_lshl_b32 {s.t0}, {s.t0}, 2')
    A(f'v_mov_b32 {V(vT0)}, {s.t0}')
lab = [0]
def decode_pick():
    lab[0] += 1; n = lab[0]
    A(f'v_readfirstlane_b32 {s.t1}, {V(vPick)}')
    A(f's_and_b32 {s.t0}, {s.t1}, 0xffff')
    A(f's_lshr_b32 {s.t1}, {s.t1}, 16')
    A(f's_or_b32 {s.pf}, {s.pf}, {s.t1}')
    A(f's_cmp_eq_u32 {s.t0}, {s.chk}')
    A(f's_cselect_b32 {s.chkpend}, 2, {s.chkpend}')
    A(f's_cmp_ge_u32 {s.t0}, {s.hc}')
    A(f's_cbranch_scc1 L_dn_own{n}')
    A(f's_add_u32 {s.t0}, {s.t0}, {s.xs}')
    A(f'v_cmp_ge_u32 vcc, {s.t0}, {V(vEXe)}')
    A(f's_bcnt1_i32_b64 {s.nseq}, vcc')
    A(f'v_readlane_b32 {s.t2}, {V(vEXe)}, {s.nseq}')
    A(f'v_readlane_b32 {s.t1}, {V(vNb)}, {s.nseq}')
    A(f's_sub_u32 {s.t2}, {s.t2}, {s.t0}')
    A(f's_sub_u32 {s.nblk}, {s.t1}, {s.t2}')
    A(f's_mov_b32 {s.nph}, 1')
    A(f's_branch L_dn_bt{n}')
    LB(f'L_dn_own{n}')
    A(f's_sub_u32 {s.t0}, {s.t0}, {s.hc}')
    A(f's_add_u32 {s.nblk}, {s.t0}, 8')
    A(f's_mov_b32 {s.nseq}, {s.ug}')
    A(f's_cmp_lt_u32 {s.nblk}, {s.own}')
    A(f's_cselect_b32 {s.nph}, 0, 2')
    A(f's_cselect_b32 {s.nblk}, {s.nblk}, 0')
    LB(f'L_dn_bt{n}')
    bt_addr()
    A(f'v_readlane_b32 {s.nlim}, {V(vCl)}, {s.nseq}')
    A(f's_lshr_b32 {s.nhoff}, {s.nseq}, 5')
    A(f's_and_b32 {s.t1}, {s.j}, 6')
    A(f's_or_b32 {s.nhoff}, {s.nhoff}, {s.t1}')
    A(f's_lshl_b32 {s.nhoff}, {s.nhoff}, 9')
    A(f's_lshl_b32 {s.t1}, {s.nblk}, 4')
    A(f's_sub_u32 {s.nlim}, {s.nlim}, {s.t1}')
def decode_fin():
    A(f'v_readfirstlane_b32 {s.nxt}, {V(vBT)}')
    A(f's_lshl_b32 {s.nxt}, {s.nxt}, 16')
    A(f's_lshl_b32 {s.t0}, {s.nlim}, 12')
    A(f's_add_u32 {s.t0}, {s.t0}, {s.nxt}')
    A(f's_cmp_lt_u32 {s.nlim}, 16')
    A(f's_cselect_b32 {s.nlim}, {s.t0}, {KV_BYTES}')
    A(f's_add_u32 {s.nxt}, {s.nxt}, {s.nhoff}')
    A(f's_cmp_eq_u32 {s.nph}, 2')
    A(f's_cselect_b32 {s.nxt}, {OOB_KV}, {s.nxt}')
def q_dma():
    A(f's_lshl_b32 {s.t1}, {s.nhoff}, 1')
    A(f's_and_b32 {s.t2}, {s.nseq}, 31')
    A(f's_lshl_b32 {s.t2}, {s.t2}, 13')
    A(f's_mov_b32 m0, {s.ldsQ}')
    A(f's_add_u32 {s.t1}, {s.t1}, {s.t2}')
    A(f'buffer_load_dwordx4 {V(vQoff)}, {srd(sQ)}, {s.t1} offen lds')
def k_dma(j):
    r = []
    if j == 0:
        r.append(f's_mov_b32 m0, {s.ldsK}')
        r.append(f's_mov_b32 s{sK+2}, {s.nlim}')
        r.append(f's_mov_b32 {s.t3}, {s.nxt}')
    else:
        r.append('s_add_u32 m0, m0, 1056')
        r.append(f's_add_u32 {s.t3}, {s.t3}, 4096')
    r.append(f'buffer_load_dwordx4 {V(vKVoff)}, {srd(sK)}, {s.t3} offen {NTK} lds')
    return r
def v_load(j):
    r = []
    if j == 0:
        r.append(f'buffer_load_dwordx4 {VR(vV, 4)}, {V(vKVoff)}, {srd(sV)}, {s.cur} offen {NTV}')
    else:
        r.append(f's_add_u32 {s.t3}, {s.cur}, {4096*j}')
        r.append(f'buffer_load_dwordx4 {VR(vV+4*j, 4)}, {V(vKVoff)}, {srd(sV)}, {s.t3} offen {NTV}')
    return r
def pick_issue():
    A(f'v_mov_b32 {V(vT0)}, 1')
    A('s_mov_b64 exec, 1')
    A(f'ds_add_rtn_u32 {V(vPick)}, {V(vMBa)}, {V(vT0)}')
    A('s_mov_b64 exec, -1')

q_dma()
A('s_waitcnt lgkmcnt(0)')
A(f's_lshl_b32 {s.nxt}, {s.nxt}, 16')
A(f's_add_u32 {s.nxt}, {s.nxt}, {s.nhoff}')
for j in range(8):
    for x in k_dma(j): A(x)
stamp(1)
A(f'v_mov_b32 {V(vT1)}, 2048')
A(f'v_mov_b32 {V(vT2)}, {f32(SCALE)}')
A('s_waitcnt vmcnt(11)')
C('effective context length, blocks per sequence, scale; lane = 32*(head parity) + sequence')
A(f'v_add_u32 {V(vT0)}, -1, {V(vCl)}')
A(f'v_cmp_gt_u32 vcc, {V(vT1)}, {V(vT0)}')
A(f'v_cmp_ge_i32 {T2P}, 0, {V(vCl)}')
A('s_nop 0')
A(f'v_cndmask_b32 {V(vCl)}, {V(vT1)}, {V(vCl)}, vcc')
A(f'v_cndmask_b32 {V(vSc)}, {V(vT2)}, 0, {T2P}')
A(f'v_add_u32 {V(vNb)}, 15, {V(vCl)}')
A(f'v_lshrrev_b32 {V(vNb)}, 4, {V(vNb)}')
A(f'v_mov_b32 {V(vT0)}, {V(vNb)}')
steps = [f'v_add_u32_dpp {V(vT0)}, {V(vT0)}, {V(vT0)} row_shr:{sh} {DPPF} bound_ctrl:0' for sh in (1, 2, 4, 8)]
steps.append(f'v_add_u32_dpp {V(vT0)}, {V(vT0)}, {V(vT0)} row_bcast:15 row_mask:0xa bank_mask:0xf')
for st in steps:
    A('s_nop 1')
    A(st)
A(f'v_cmp_gt_u32 vcc, 32, {V(vLane)}')
A(f'v_readlane_b32 {s.t0}, {V(vT0)}, 31')
A(f's_add_u32 {s.t0}, {s.t0}, 31')
A(f's_lshr_b32 {s.t0}, {s.t0}, 5')
A(f's_sub_u32 {s.t1}, {s.t0}, 1')
A(f's_min_u32 {s.t1}, {s.t1}, {DELTA}')
A(f's_add_u32 {s.t2}, {s.t0}, {s.t1}')
A(f's_sub_u32 {s.t1}, {s.t0}, {s.t1}')
A(f'v_mov_b32 {V(vT2)}, {s.t1}')
A(f'v_mov_b32 {V(vT3)}, {s.t2}')
A(f'v_cndmask_b32 {V(vT2)}, {V(vT2)}, {V(vT3)}, vcc')
A(f'v_min_u32 {V(vT1)}, {V(vT2)}, {V(vNb)}')
A(f'v_sub_u32 {V(vEx)}, {V(vNb)}, {V(vT1)}')
A(f'v_sub_u32 {V(vSp)}, {V(vT2)}, {V(vT1)}')
A(f'v_lshl_or_b32 {V(vT0)}, {V(vSp)}, 16, {V(vEx)}')
A(f'v_cmp_ne_u32 {MEX}, 0, {V(vEx)}')
A(f'v_cmp_ne_u32 {MSP}, 0, {V(vSp)}')
for st in steps + [f'v_add_u32_dpp {V(vT0)}, {V(vT0)}, {V(vT0)} row_bcast:31 row_mask:0xc bank_mask:0xf']:
    A('s_nop 1')
    A(st)
C('the block table has landed (only newer requests are outstanding)')
A('s_waitcnt vmcnt(9)')
A('s_barrier')
stamp(2)
A(f'v_readlane_b32 {s.own}, {V(vT1)}, {s.ug}')
A(f'v_readlane_b32 {s.k0}, {V(vSp)}, {s.ug}')
A(f'v_and_b32 {V(vEXe)}, 0xffff, {V(vT0)}')
A(f'v_lshrrev_b32 {V(vSPe)}, 16, {V(vT0)}')
A(f's_bfm_b64 {T0P}, {s.ug}, 0')
A(f's_and_b64 {T0P}, {T0P}, {MSP}')
A(f's_bcnt1_i32_b64 {s.rank}, {T0P}')
A(f'v_readlane_b32 {s.t3}, {V(vEXe)}, 63')
A(f'v_readlane_b32 {s.xe}, {V(vSPe)}, {s.ug}')
A(f'v_readlane_b32 {s.exg}, {V(vEx)}, {s.ug}')
A(f's_sub_u32 {s.xs}, {s.xe}, {s.k0}')
A(f's_min_u32 {s.xs}, {s.xs}, {s.t3}')
A(f's_min_u32 {s.xe}, {s.xe}, {s.t3}')
A(f's_sub_u32 {s.hc}, {s.xe}, {s.xs}')
A(f'v_cmp_ge_u32 vcc, {s.xs}, {V(vEXe)}')
A(f's_and_b64 {T0P}, vcc, {MEX}')
A(f's_bcnt1_i32_b64 {s.rkx0}, {T0P}')
def rank_of(xs, dst):
    A(f'v_cmp_ge_u32 vcc, {xs}, {V(vSPe)}')
    A(f's_and_b64 {T2P}, vcc, {MSP}')
    A(f's_bcnt1_i32_b64 {dst}, {T2P}')
def helper_span(sb):
    A(f'v_readlane_b32 {s.t0}, {V(vEXe)}, {sb}')
    A(f'v_readlane_b32 {s.k0}, {V(vEx)}, {sb}')
    A(f's_sub_u32 {s.k0}, {s.t0}, {s.k0}')
    A(f's_sub_u32 {s.t0}, {s.t0}, 1')
    rank_of(s.t0, s.n)
    rank_of(s.k0, s.slot0)
    A(f's_sub_u32 {s.n}, {s.n}, {s.slot0}')
    A(f's_add_u32 {s.n}, {s.n}, 1')
    A(f's_add_u32 {s.slot0}, {s.slot0}, {sb}')
helper_span(s.ug)
C('row limit of the first block (for V)')
A(f'v_readlane_b32 {s.t0}, {V(vCl)}, {s.ug}')
A(f's_lshl_b32 {s.t1}, {s.h}, 4')
A(f's_sub_u32 {s.t0}, {s.t0}, {s.t1}')
A(f's_lshl_b32 {s.t1}, {s.t0}, 12')
A(f's_sub_u32 {s.t2}, {s.nxt}, {s.nhoff}')
A(f's_add_u32 {s.t1}, {s.t1}, {s.t2}')
A(f's_cmp_lt_u32 {s.t0}, 16')
A(f's_cselect_b32 {s.nlim}, {s.t1}, {KV_BYTES}')
A(f's_sub_u32 {s.chk}, {s.own}, {8 + CHK}')
A(f's_max_i32 {s.chk}, {s.chk}, 0')
A(f's_add_u32 {s.chk}, {s.chk}, {s.hc}')
A(f's_cmp_eq_u32 {s.exg}, 0')
A(f's_cselect_b32 {s.n}, 0, {s.n}')
A(f's_cselect_b32 {s.pf}, 3, 0')
A(f's_cselect_b32 {s.chk}, 0xffff, {s.chk}')
A(f's_lshl_b32 {s.t0}, {s.h}, 8')
A(f'v_add_u32 {V(vSlOff)}, {s.t0}, {V(vLane4)}')
for r in range(32):
    A(f'v_mov_b32 {V(vAcc+r)}, 0')
A(f'v_mov_b32 {V(vM)}, {f32(-1e30)}')
A(f'v_mov_b32 {V(vL)}, 0')
A(f'v_mov_b32 {V(vRet)}, 0')
A(f'v_mov_b32 {V(vSegB)}, 0')
stamp(3)
A(f's_cmp_lt_u32 {s.h}, {s.own}')
A('s_cbranch_scc1 L_newseg')
C('no own first block for this wave: take one from the list')
pick_issue()
A('s_waitcnt vmcnt(0) lgkmcnt(0)')
decode_pick()
A(f'ds_read_b32 {V(vBT)}, {V(vT0)}')
q_dma()
A('s_waitcnt lgkmcnt(0)')
decode_fin()
for j in range(8):
    for x in k_dma(j): A(x)
A(f's_cmp_eq_u32 {s.nph}, 2')
A('s_cbranch_scc1 L_own_done')
A('s_branch L_newseg')

def merge_halves():
    A(f'v_mov_b32 {V(vT0)}, {V(vL)}')
    A(f'v_mov_b32 {V(vT1)}, {V(vM)}')
    A(f'v_mov_b32 {V(vT2)}, {V(vM)}')
    A('s_nop 0')
    A(f'v_permlane16_swap_b32 {V(vL)}, {V(vT0)}')
    A(f'v_permlane32_swap_b32 {V(vT1)}, {V(vT2)}')
    A(f'v_add_f32 {V(vL)}, {V(vL)}, {V(vT0)}')
    A(f'v_max_f32 {V(vMn)}, {V(vT1)}, {V(vT2)}')
    A(f'v_sub_f32 {V(vT2)}, {V(vM)}, {V(vMn)}')
    A(f'v_mul_f32 {V(vT2)}, {s.c}, {V(vT2)}')
    A(f'v_exp_f32 {V(vT2)}, {V(vT2)}')
    A(f'v_mul_f32 {V(vT4)}, {s.c}, {V(vMn)}')
    A('s_nop 0')
    A(f'v_mul_f32 {V(vL)}, {V(vL)}, {V(vT2)}')
    for e in range(8):
        A(f'v_mul_f32_dpp {V(vAcc+4*e)}, {V(vT2)}, {V(vAcc+4*e)} quad_perm:[0,0,2,2] {DPPF}')
        A(f'v_mul_f32_dpp {V(vAcc+4*e+1)}, {V(vT2)}, {V(vAcc+4*e+1)} quad_perm:[1,1,3,3] {DPPF}')
    A(f'v_mov_b32 {V(vT0)}, {V(vL)}')
    A('s_nop 1')
    A(f'v_permlane32_swap_b32 {V(vL)}, {V(vT0)}')
    for e in range(8):
        A(f'v_permlane32_swap_b32 {V(vAcc+4*e)}, {V(vAcc+4*e+1)}')
    A(f'v_add_f32 {V(vT5)}, {V(vL)}, {V(vT0)}')
    for e in range(8):
        A(f'v_add_f32 {V(vKf+e)}, {V(vAcc+4*e)}, {V(vAcc+4*e+1)}')
    A(f'v_lshlrev_b32 {V(vT0)}, 3, {V(vLane)}')
def lds_record(sbase):
    A(f'v_add_u32 {V(vT1)}, {sbase}, {V(vPoff)}')
    A(f'v_add_u32 {V(vT0)}, {sbase}, {V(vT0)}')
    A(f'ds_write_b128 {V(vT1)}, {VR(vKf,4)}')
    A(f'ds_write_b128 {V(vT1)}, {VR(vKf+4,4)} offset:512')
    A('s_mov_b64 exec, 3')
    A(f'ds_write_b64 {V(vT0)}, {VR(vT4,2)} offset:2048')
    A('s_mov_b64 exec, -1')
def reset_state():
    for e in range(8):
        A(f'v_mov_b32 {V(vAcc+4*e)}, 0')
        A(f'v_mov_b32 {V(vAcc+4*e+1)}, 0')
    A(f'v_mov_b32 {V(vM)}, {f32(-1e30)}')
    A(f'v_mov_b32 {V(vL)}, 0')
def ctr_pos(su, daddr, dshift):
    A(f's_and_b32 {daddr}, {su}, 31')
    A(f's_lshl_b32 {daddr}, {daddr}, 3')
    A(f's_and_b32 {dshift}, {s.j}, 4')
    A(f's_add_u32 {daddr}, {daddr}, {dshift}')
    A(f's_lshr_b32 {dshift}, {su}, 5')
    A(f's_and_b32 {s.t3}, {s.j}, 2')
    A(f's_or_b32 {dshift}, {dshift}, {s.t3}')
    A(f's_lshl_b32 {dshift}, {dshift}, 3')
def signal(sb, scnt):
    ctr_pos(sb, s.t0, s.t1)
    A(f's_lshl_b32 {s.t1}, {scnt}, {s.t1}')
    A(f's_lshl_b32 {s.t2}, {scnt}, 8')
    A(f's_or_b32 {s.t2}, {s.t2}, {sb}')
    A(f'v_mov_b32 {V(vT2)}, {s.t0}')
    A(f's_lshl_b64 exec, 1, {s.seg}')
    A(f'v_mov_b32 {V(vSegB)}, {s.t2}')
    A(f'v_mov_b32 {V(vRet)}, {s.t1}')
    A(f'buffer_atomic_add {V(vRet)}, {V(vT2)}, {srd(sDBG)}, 0 offen sc0')
    A('s_mov_b64 exec, -1')
    A(f's_add_u32 {s.seg}, {s.seg}, 1')
def chk_issue():
    ctr_pos(s.ug, s.t0, s.t1)
    A(f'v_mov_b32 {V(vT2)}, {s.t0}')
    A(f'buffer_load_dword {V(vChk)}, {V(vT2)}, {srd(sDBG)}, 0 offen sc1')
def chk_eval(tag):
    A(f'v_readfirstlane_b32 {s.t0}, {V(vChk)}')
    A(f's_and_b32 {s.t1}, {s.j}, 3')
    A(f's_lshl_b32 {s.t1}, {s.t1}, 3')
    A(f's_lshr_b32 {s.t0}, {s.t0}, {s.t1}')
    A(f's_and_b32 {s.t0}, {s.t0}, 0xff')
    if OPT['forceslow'] == '1':
        A(f's_add_u32 {s.t0}, {s.t0}, 1000')
    A(f's_cmp_lg_u32 {s.t0}, {s.exg}')
    A(f's_cbranch_scc1 L_chkno{tag}')
    A(f'v_mov_b32 {V(vT2)}, 0x10000')
    A(f'ds_or_b32 {V(vMBa)}, {V(vT2)}' + (' offset:4' if tag == 'c' else ''))
    LB(f'L_chkno{tag}')
def rec_addr(sslot, ddata, dstat):
    A(f's_lshl_b32 {dstat}, {sslot}, 2')
    A(f's_lshr_b32 {ddata}, {s.j}, 1')
    A(f's_add_u32 {dstat}, {dstat}, {ddata}')
    A(f's_lshl_b32 {ddata}, {dstat}, 11')
    A(f's_lshl_b32 {dstat}, {dstat}, 7')
    A(f's_add_u32 {dstat}, {dstat}, {STATS}')
def pf_issue():
    rec_addr(s.slot, s.t2, s.t0)
    A(f's_and_b32 {s.t3}, {s.h}, 4')
    A(f's_lshl_b32 {s.t3}, {s.t3}, 1')
    A(f's_add_u32 {s.t0}, {s.t0}, {s.t3}')
    A(f's_min_u32 {s.t1}, {s.t1}, {NPF}')
    A(f'v_and_b32 {V(vT0)}, 15, {V(vLane)}')
    A(f'v_cmp_gt_u32 vcc, {s.t1}, {V(vT0)}')
    A(f'v_lshlrev_b32 {V(vT0)}, 9, {V(vT0)}')
    A(f'v_mov_b32 {V(vT1)}, {OOB_WS}')
    A('s_nop 0')
    A(f'v_cndmask_b32 {V(vT1)}, {V(vT1)}, {V(vT0)}, vcc')
    A(f'buffer_load_dwordx2 {VR(vYS,2)}, {V(vT1)}, {srd(sWS)}, {s.t0} offen sc1')
    for k in range(NPF):
        A(f's_cmp_gt_u32 {s.t1}, {k}')
        A(f's_cselect_b32 {s.t3}, {s.t2}, {OOB_WS}')
        A(f'buffer_load_dword {V(vY+k)}, {V(vSlOff)}, {srd(sWS)}, {s.t3} offen sc1')
        A(f's_add_u32 {s.t2}, {s.t2}, 8192')
def row_allreduce(op, v):
    for sh in (1, 2, 4, 8):
        A('s_nop 1')
        A(f'v_{op}_f32_dpp {V(v)}, {V(v)}, {V(v)} row_ror:{sh} {DPPF}')

LB('L_deposit')
merge_halves()
A(f's_bfm_b64 {T0P}, {s.cb}, 0')
A(f's_and_b64 {T0P}, {T0P}, {MEX}')
A(f's_bcnt1_i32_b64 {s.t0}, {T0P}')
A(f's_sub_u32 {s.k0}, {s.t0}, {s.rkx0}')
A(f's_and_b32 {s.t0}, {s.k0}, {NA-1}')
A(f's_lshl_b32 {s.t1}, {s.t0}, 2')
A(f's_add_u32 {s.t1}, {s.t1}, {LDS_MB + 16}')
A(f'v_mov_b32 {V(vT3)}, {s.t1}')
A(f's_mul_i32 {s.slot}, {s.t0}, {8*REC}')
A(f's_add_u32 {s.slot}, {s.slot}, {LDS_AR}')
LB('L_gen')
A(f'ds_read_b32 {V(vT2)}, {V(vT3)}')
A('s_waitcnt lgkmcnt(0)')
A(f'v_readfirstlane_b32 {s.t0}, {V(vT2)}')
A(f's_lshr_b32 {s.t0}, {s.t0}, 16')
A(f's_cmp_lg_u32 {s.t0}, {s.k0}')
A('s_cbranch_scc1 L_gen')
A(f's_mul_i32 {s.t0}, {s.h}, {REC}')
A(f's_add_u32 {s.t0}, {s.t0}, {s.slot}')
lds_record(s.t0)
A(f's_lshl_b32 {s.t0}, 0x100, {s.h}')
A(f's_add_u32 {s.t0}, {s.t0}, {s.segcnt}')
A(f'v_mov_b32 {V(vT2)}, {s.t0}')
A(f'v_readlane_b32 {s.t1}, {V(vEXe)}, {s.cb}')
A(f'v_readlane_b32 {s.t2}, {V(vEx)}, {s.cb}')
A('s_waitcnt lgkmcnt(0)')
A('s_mov_b64 exec, 1')
A(f'ds_add_rtn_u32 {V(vT1)}, {V(vT3)}, {V(vT2)}')
A('s_mov_b64 exec, -1')
A(f's_sub_u32 {s.t2}, {s.t1}, {s.t2}')
A(f's_max_u32 {s.t2}, {s.t2}, {s.xs}')
A(f's_min_u32 {s.t1}, {s.t1}, {s.xe}')
A(f's_sub_u32 {s.t1}, {s.t1}, {s.t2}')
A(f's_mov_b32 {s.segcnt}, 0')
A('s_waitcnt lgkmcnt(0)')
A(f'v_readfirstlane_b32 {s.t2}, {V(vT1)}')
A(f's_add_u32 {s.t0}, {s.t0}, {s.t2}')
A(f's_and_b32 {s.t2}, {s.t0}, 0xff')
A(f's_cmp_lg_u32 {s.t2}, {s.t1}')
A('s_cbranch_scc1 L_deposited')
if OPT['delayhelp'] == '1':
    A(f's_mov_b32 {s.pendcnt}, 40')
    LB('L_dly')
    A('s_sleep 127')
    A(f's_sub_u32 {s.pendcnt}, {s.pendcnt}, 1')
    A(f's_cmp_lg_u32 {s.pendcnt}, 0')
    A('s_cbranch_scc1 L_dly')
C('merge the deposited records of the waves in mask t0[15:8]')
A(f's_mov_b32 {s.pendcnt}, {s.t1}')
A(f's_mov_b32 {s.pendb}, {s.cb}')
A(f's_bfe_u32 {s.t0}, {s.t0}, 0x80008')
A(f'v_and_b32 {V(vT0)}, 7, {V(vLane)}')
A(f'v_mul_u32_u24 {V(vT0)}, {REC}, {V(vT0)}')
A(f'v_lshrrev_b32 {V(vT1)}, 5, {V(vLane)}')
A(f'v_lshl_add_u32 {V(vT0)}, {V(vT1)}, 3, {V(vT0)}')
A(f'v_add_u32 {V(vT0)}, {s.slot}, {V(vT0)}')
A(f'v_add_u32 {V(vT1)}, {s.slot}, {V(vPoff)}')
A(f'ds_read_b64 {VR(vXS,2)}, {V(vT0)} offset:2048')
for u in range(8):
    A(f'ds_read_b128 {VR(vKf+8*u,4)}, {V(vT1)} offset:{u*REC}')
    A(f'ds_read_b128 {VR(vKf+8*u+4,4)}, {V(vT1)} offset:{u*REC+512}')
A(f'v_and_b32 {V(vT0)}, 15, {V(vLane)}')
A(f'v_lshrrev_b32 {V(vT0)}, {V(vT0)}, {s.t0}')
A(f'v_and_b32 {V(vT0)}, 1, {V(vT0)}')
A(f'v_cmp_ne_u32 vcc, 0, {V(vT0)}')
A(f's_add_u32 {s.t1}, {s.k0}, {NA}')
A(f's_lshl_b32 {s.t1}, {s.t1}, 16')
A(f'v_mov_b32 {V(vT2)}, {s.t1}')
A('s_waitcnt lgkmcnt(0)')
A(f'ds_write_b32 {V(vT3)}, {V(vT2)}')
A(f'v_cndmask_b32 {V(vXS)}, {V(vNegInf)}, {V(vXS)}, vcc')
A(f'v_cndmask_b32 {V(vXS+1)}, 0, {V(vXS+1)}, vcc')
A(f'v_mov_b32 {V(vS)}, {V(vXS)}')
row_allreduce('max', vS)
A(f'v_sub_f32 {V(vWA)}, {V(vXS)}, {V(vS)}')
A(f'v_exp_f32 {V(vWA)}, {V(vWA)}')
for e in range(8):
    A(f'v_mov_b32 {V(vAcc+e)}, 0')
A(f'v_mul_f32 {V(vS+1)}, {V(vWA)}, {V(vXS+1)}')
row_allreduce('add', vS+1)
for u in range(8):
    A(f's_bitcmp0_b32 {s.t0}, {u}')
    A(f's_cbranch_scc1 L_mskip{u}')
    for e in range(8):
        A(f'v_fmac_f32_dpp {V(vAcc+e)}, {V(vWA)}, {V(vKf+8*u+e)} row_newbcast:{u} {DPPF}')
    LB(f'L_mskip{u}')
A(f'v_readlane_b32 {s.t2}, {V(vS)}, 32')
A(f'v_readlane_b32 {s.t3}, {V(vS+1)}, 32')
A(f's_add_u32 {s.slot}, {s.rank}, {s.cb}')
rec_addr(s.slot, s.t1, s.t0)
A(f'v_mov_b32 {V(vS+2)}, {s.t2}')
A(f'v_mov_b32 {V(vS+3)}, {s.t3}')
A(f'buffer_store_dwordx4 {VR(vAcc,4)}, {V(vPoff)}, {srd(sWS)}, {s.t1} offen sc1')
A(f'buffer_store_dwordx4 {VR(vAcc+4,4)}, {V(vPoff)}, {srd(sWS)}, {s.t1} offen offset:512 sc1')
A('s_mov_b64 exec, 0xff')
A(f'buffer_store_dwordx4 {VR(vS,4)}, {V(vQoff)}, {srd(sWS)}, {s.t0} offen sc1')
A('s_mov_b64 exec, -1')
A(f's_add_u32 {s.ex}, {s.ex}, 3')
A('s_nop 0')
LB('L_deposited')
A(f's_cmp_eq_u32 {s.nph}, 1')
A('s_cbranch_scc1 L_fresh')
A(f's_cmp_eq_u32 {s.saved}, 0')
A('s_cbranch_scc1 L_fresh')
C('back to the own sequence')
for e in range(8):
    A(f'v_mov_b32 {V(vAcc+4*e)}, {V(vSave+2*e)}')
    A(f'v_mov_b32 {V(vAcc+4*e+1)}, {V(vSave+2*e+1)}')
A(f'v_mov_b32 {V(vM)}, {V(vSave+16)}')
A(f'v_mov_b32 {V(vL)}, {V(vSave+17)}')
A('s_branch L_after')
LB('L_save')
for e in range(8):
    A(f'v_mov_b32 {V(vSave+2*e)}, {V(vAcc+4*e)}')
    A(f'v_mov_b32 {V(vSave+2*e+1)}, {V(vAcc+4*e+1)}')
A(f'v_mov_b32 {V(vSave+16)}, {V(vM)}')
A(f'v_mov_b32 {V(vSave+17)}, {V(vL)}')
A(f's_mov_b32 {s.saved}, 1')
A(f's_mov_b32 {s.segcnt}, 0')
LB('L_fresh')
reset_state()
LB('L_after')
A(f's_cmp_eq_u32 {s.nph}, 2')
A('s_cbranch_scc1 L_own_done')
LB('L_newseg')
A(f'v_readlane_b32 {s.c}, {V(vSc)}, {s.nseq}')
A(f'v_readlane_b32 {s.ccl}, {V(vCl)}, {s.nseq}')
A(f's_mov_b32 {s.needq}, 1')

LB('L_loop')
A(f's_mov_b32 {s.cur}, {s.nxt}')
A(f's_mov_b32 {s.cb}, {s.nseq}')
A(f's_mov_b32 {s.cblk}, {s.nblk}')
A(f's_mov_b32 {s.cph}, {s.nph}')
A(f's_mov_b32 s{sV+2}, {s.nlim}')
A(f's_add_u32 {s.segcnt}, {s.segcnt}, 1')
C('K (and Q) must have landed; the s.ex hand-off operations issued behind them may stay in flight')
A(f's_cmp_eq_u32 {s.ex}, 0')
A('s_cbranch_scc1 L_w0')
A(f's_cmp_ge_u32 {s.ex}, {NPF+1}')
A('s_cbranch_scc1 L_w9')
A(f's_cmp_ge_u32 {s.ex}, 3')
A('s_cbranch_scc1 L_w3')
A('s_waitcnt vmcnt(1)')
A('s_branch L_wdone')
LB('L_w9')
A(f's_waitcnt vmcnt({NPF+1})')
A('s_branch L_wdone')
LB('L_w3')
A('s_waitcnt vmcnt(3)')
A('s_branch L_wdone')
LB('L_w0')
A('s_waitcnt vmcnt(0)')
LB('L_wdone')
A(f's_mov_b32 {s.ex}, 0')
for j in range(8):
    for x in v_load(j): A(x)
pick_issue()
A(f's_cmp_eq_u32 {s.needq}, 0')
A('s_cbranch_scc1 L_noq')
for j in range(8):
    A(f'ds_read_b128 {VR(vQ+4*j, 4)}, {V(vQrd)} offset:{64*j}')
A(f's_mov_b32 {s.needq}, 0')
LB('L_noq')
for j in range(8):
    A(f'ds_read_b128 {VR(vKf+4*j, 4)}, {V(vKrd)} offset:{64*j}')
for j in range(8):
    A(f's_waitcnt lgkmcnt({7-j})')
    A(f'v_mfma_f32_16x16x32_bf16 {VR(vS,4)}, {VR(vKf+4*j,4)}, {VR(vQ+4*j,4)}, {VR(vS,4) if j else 0}')
decode_pick()
A(f'ds_read_b32 {V(vBT)}, {V(vT0)}')
C('mask the tail of the last block of a sequence')
A(f's_lshl_b32 {s.t0}, {s.cblk}, 4')
A(f's_sub_u32 {s.t0}, {s.ccl}, {s.t0}')
A(f's_cmp_ge_u32 {s.t0}, 16')
A('s_cbranch_scc1 L_nomask')
for i in range(4):
    A(f'v_cmp_gt_i32 vcc, {s.t0}, {V(vTok)}')
    A(f's_sub_u32 {s.t0}, {s.t0}, 1')
    A('s_nop 0')
    A(f'v_cndmask_b32 {V(vS+i)}, {V(vNegInf)}, {V(vS+i)}, vcc')
LB('L_nomask')
A(f'v_max3_f32 {V(vT0)}, {V(vS)}, {V(vS+1)}, {V(vS+2)}')
A(f'v_max_f32 {V(vT0)}, {V(vT0)}, {V(vS+3)}')
A(f'v_mov_b32 {V(vT1)}, {V(vT0)}')
A('s_nop 1')
A(f'v_permlane16_swap_b32 {V(vT0)}, {V(vT1)}')
A(f'v_max3_f32 {V(vMn)}, {V(vT0)}, {V(vT1)}, {V(vM)}')
A(f'v_cmp_gt_f32 vcc, {V(vMn)}, {V(vM)}')
A('s_cbranch_vccz L_norescale')
A(f'v_sub_f32 {V(vT2)}, {V(vM)}, {V(vMn)}')
A(f'v_mul_f32 {V(vT2)}, {s.c}, {V(vT2)}')
A(f'v_exp_f32 {V(vT2)}, {V(vT2)}')
A(f'v_mov_b32 {V(vM)}, {V(vMn)}')
A('s_nop 0')
A(f'v_mul_f32 {V(vL)}, {V(vL)}, {V(vT2)}')
for e in range(8):
    A(f'v_mul_f32_dpp {V(vAcc+4*e)}, {V(vT2)}, {V(vAcc+4*e)} quad_perm:[0,0,2,2] {DPPF}')
    A(f'v_mul_f32_dpp {V(vAcc+4*e+1)}, {V(vT2)}, {V(vAcc+4*e+1)} quad_perm:[1,1,3,3] {DPPF}')
LB('L_norescale')
A(f'v_mul_f32 {V(vT0)}, {s.c}, {V(vM)}')
for i in range(4):
    A(f'v_fma_f32 {V(vS+i)}, {V(vS+i)}, {s.c}, -{V(vT0)}')
for i in range(4):
    A(f'v_exp_f32 {V(vS+i)}, {V(vS+i)}')
A('s_waitcnt lgkmcnt(0)')
decode_fin()
A(f'v_add_f32 {V(vT0)}, {V(vS)}, {V(vS+1)}')
A(f'v_add_f32 {V(vT1)}, {V(vS+2)}, {V(vS+3)}')
A(f'v_cvt_pk_bf16_f32 {V(vPk)}, {V(vS)}, {V(vS+1)}')
A(f'v_cvt_pk_bf16_f32 {V(vPk+1)}, {V(vS+2)}, {V(vS+3)}')
A(f'v_add_f32 {V(vT0)}, {V(vT0)}, {V(vT1)}')
A(f'v_add_f32 {V(vL)}, {V(vL)}, {V(vT0)}')
C('segment change ahead: s.i = 1; fetch its Q')
A(f's_cmp_lg_u32 {s.nseq}, {s.cb}')
A(f's_cselect_b32 {s.i}, 1, 0')
A(f's_cmp_lg_u32 {s.nph}, {s.cph}')
A(f's_cselect_b32 {s.i}, 1, {s.i}')
A('s_waitcnt vmcnt(0)')
A(f's_cmp_eq_u32 {s.i}, 0')
A('s_cbranch_scc1 L_sameseg')
q_dma()
LB('L_sameseg')
for j in range(8):
    for x in k_dma(j): A(x)
def handoffs(tag):
    A(f's_cmp_eq_u32 {s.pendcnt}, 0')
    A(f's_cbranch_scc1 L_nopend{tag}')
    signal(s.pendb, s.pendcnt)
    A(f's_mov_b32 {s.pendcnt}, 0')
    A(f's_add_u32 {s.ex}, {s.ex}, 1')
    LB(f'L_nopend{tag}')
    A(f's_cmp_lg_u32 {s.chkpend}, 1')
    A(f's_cbranch_scc1 L_nochk{tag}')
    chk_eval(tag)
    A(f's_mov_b32 {s.chkpend}, 0')
    LB(f'L_nochk{tag}')
handoffs('a')
A(f's_cmp_lg_u32 {s.chkpend}, 2')
A('s_cbranch_scc1 L_nochk2')
chk_issue()
A(f's_mov_b32 {s.chkpend}, 1')
A(f's_add_u32 {s.ex}, {s.ex}, 1')
LB('L_nochk2')
A(f's_cmp_lg_u32 {s.pf}, 1')
A('s_cbranch_scc1 L_nopf')
A(f's_mov_b32 {s.slot}, {s.slot0}')
A(f's_mov_b32 {s.t1}, {s.n}')
pf_issue()
A(f's_mov_b32 {s.pf}, 3')
A(f's_add_u32 {s.ex}, {s.ex}, {NPF+1}')
LB('L_nopf')
def perms(g):
    r = []
    for rr in range(4):
        for q in range(2):
            e = 2*rr + q
            sel = s.sel1 if q else s.sel0
            d = vKf + 16*g + 2*e
            r.append(f'v_perm_b32 {V(d)}, {V(vV+4*(4*g+1)+rr)}, {V(vV+4*(4*g)+rr)}, {sel}')
            r.append(f'v_perm_b32 {V(d+1)}, {V(vV+4*(4*g+3)+rr)}, {V(vV+4*(4*g+2)+rr)}, {sel}')
    return r
def pv(g, e):
    return f'v_mfma_f32_4x4x4_16b_bf16 {VR(vAcc+4*e,4)}, {VR(vPk,2)}, {VR(vKf+16*g+2*e,2)}, {VR(vAcc+4*e,4)} cbsz:3 abid:{4*g}'
for x in perms(0): A(x)
p1 = perms(1)
for e in range(8):
    A(pv(0, e))
    A(p1[2*e]); A(p1[2*e+1])
A('s_nop 0')
for e in range(8):
    A(pv(1, e))
A(f's_cmp_eq_u32 {s.i}, 0')
A('s_cbranch_scc1 L_loop')
A(f's_cmp_lg_u32 {s.cph}, 0')
A('s_cbranch_scc1 L_deposit')
A(f's_cmp_eq_u32 {s.nph}, 1')
A('s_nop 0')
A('s_cbranch_scc1 L_save')

LB('L_own_done')
A(f'v_readlane_b32 {s.c}, {V(vSc)}, {s.g}')
stamp(4)
A('s_nop 1')
merge_halves()
A('s_waitcnt vmcnt(0)')
lds_record(s.ldsK)
handoffs('b')
C('LDS addresses of the final merge')
A(f'v_and_b32 {V(vT0)}, 7, {V(vLane)}')
A(f'v_mul_u32_u24 {V(vT0)}, {KSLOT}, {V(vT0)}')
A(f's_and_b32 {s.t0}, {s.h}, 4')
A(f's_lshl_b32 {s.t0}, {s.t0}, 1')
A(f's_add_u32 {s.t0}, {s.t0}, {LDS_K + 2048}')
A(f'v_add_u32 {V(vT0)}, {s.t0}, {V(vT0)}')
A(f'v_add_u32 {V(vT1)}, {LDS_K}, {V(vSlOff)}')
A('s_waitcnt lgkmcnt(0)')
A('s_barrier')
stamp(5)
A(f'ds_read_b32 {V(vPick)}, {V(vMBa)}')
A(f'ds_read_b64 {VR(vXS,2)}, {V(vT0)}')
for k in range(8):
    A(f'ds_read_b32 {V(vKf+k)}, {V(vT1)} offset:{k*KSLOT}')
A(f's_cmp_eq_u32 {s.exg}, 0')
A('s_cbranch_scc1 L_fast')
A('s_waitcnt lgkmcnt(9)')
A(f'v_readfirstlane_b32 {s.t0}, {V(vPick)}')
A(f's_lshr_b32 {s.t0}, {s.t0}, 16')
A(f's_cmp_lg_u32 {s.t0}, 0')
A('s_cbranch_scc1 L_fast')
C('not seen complete yet: look once more')
A(f's_cmp_lg_u32 {s.h}, 0')
A('s_cbranch_scc1 L_rechk')
chk_issue()
A('s_waitcnt vmcnt(0)')
chk_eval('c')
A('s_waitcnt lgkmcnt(0)')
LB('L_rechk')
A('s_barrier')
A(f'ds_read_b32 {V(vPick)}, {V(vMBa)} offset:4')
A('s_waitcnt lgkmcnt(0)')
A(f'v_readfirstlane_b32 {s.t0}, {V(vPick)}')
A(f's_lshr_b32 {s.t0}, {s.t0}, 16')
A(f's_cmp_lg_u32 {s.t0}, 0')
A('s_cbranch_scc1 L_fast')
A(f's_mov_b32 {s.n}, 0')
A(f's_mov_b32 {s.pf}, 4')
LB('L_fast')
A(f's_mov_b32 {s.slot}, {s.slot0}')
A(f's_mov_b32 {s.k0}, 0')
A(f's_and_b32 {s.t0}, {s.pf}, 6')
A(f's_cmp_lg_u32 {s.t0}, 0')
A('s_cbranch_scc1 L_havepf')
A(f's_mov_b32 {s.t1}, {s.n}')
pf_issue()
LB('L_havepf')
C('first pass: 8 LDS partials and up to NPF helper records')
A(f's_min_u32 {s.t1}, {s.n}, {NPF}')
A(f'v_and_b32 {V(vT0)}, 15, {V(vLane)}')
A(f'v_cmp_gt_u32 vcc, {s.t1}, {V(vT0)}')
A(f'v_cmp_gt_u32 {T2P}, 8, {V(vT0)}')
A('s_waitcnt vmcnt(0) lgkmcnt(0)')
A(f'v_cndmask_b32 {V(vYS)}, {V(vNegInf)}, {V(vYS)}, vcc')
A(f'v_cndmask_b32 {V(vYS+1)}, 0, {V(vYS+1)}, vcc')
A(f'v_cndmask_b32 {V(vXS)}, {V(vNegInf)}, {V(vXS)}, {T2P}')
A(f'v_max_f32 {V(vM)}, {V(vYS)}, {V(vXS)}')
row_allreduce('max', vM)
A(f'v_sub_f32 {V(vWA)}, {V(vXS)}, {V(vM)}')
A(f'v_sub_f32 {V(vWB)}, {V(vYS)}, {V(vM)}')
A(f'v_exp_f32 {V(vWA)}, {V(vWA)}')
A(f'v_exp_f32 {V(vWB)}, {V(vWB)}')
A(f'v_mov_b32 {V(vT3)}, 0')
A(f'v_mul_f32 {V(vL)}, {V(vWA)}, {V(vXS+1)}')
A(f'v_fmac_f32 {V(vL)}, {V(vWB)}, {V(vYS+1)}')
for k in range(8):
    A(f'v_fmac_f32_dpp {V(vT3)}, {V(vWA)}, {V(vKf+k)} row_newbcast:{k} {DPPF}')
for sh in (1, 2, 4, 8):
    A(f'v_add_f32_dpp {V(vL)}, {V(vL)}, {V(vL)} row_ror:{sh} {DPPF}')
    A('s_nop 1')
A(f's_cmp_eq_u32 {s.n}, 0')
A('s_cbranch_scc1 L_merged')
for k in range(NPF):
    A(f'v_fmac_f32_dpp {V(vT3)}, {V(vWB)}, {V(vY+k)} row_newbcast:{k} {DPPF}')
LB('L_more')
A(f's_add_u32 {s.k0}, {s.k0}, {NPF}')
A(f's_cmp_ge_u32 {s.k0}, {s.n}')
A('s_cbranch_scc1 L_merged')
C('more helper records: further passes')
A(f's_add_u32 {s.slot}, {s.slot}, {NPF}')
A(f's_sub_u32 {s.t1}, {s.n}, {s.k0}')
pf_issue()
A('s_waitcnt vmcnt(0)')
A(f'v_cndmask_b32 {V(vYS)}, {V(vNegInf)}, {V(vYS)}, vcc')
A(f'v_max_f32 {V(vT0)}, {V(vYS)}, {V(vM)}')
row_allreduce('max', vT0)
A(f'v_sub_f32 {V(vWB)}, {V(vYS)}, {V(vT0)}')
A(f'v_sub_f32 {V(vT1)}, {V(vM)}, {V(vT0)}')
A(f'v_exp_f32 {V(vWB)}, {V(vWB)}')
A(f'v_exp_f32 {V(vT1)}, {V(vT1)}')
A(f'v_mov_b32 {V(vM)}, {V(vT0)}')
A(f'v_mul_f32 {V(vT2)}, {V(vWB)}, {V(vYS+1)}')
row_allreduce('add', vT2)
A(f'v_fma_f32 {V(vL)}, {V(vL)}, {V(vT1)}, {V(vT2)}')
A(f'v_mul_f32 {V(vT3)}, {V(vT3)}, {V(vT1)}')
for k in range(NPF):
    A(f'v_fmac_f32_dpp {V(vT3)}, {V(vWB)}, {V(vY+k)} row_newbcast:{k} {DPPF}')
A('s_branch L_more')
LB('L_merged')
A(f's_cmp_eq_u32 {s.pf}, 4')
A('s_cbranch_scc1 L_slow')
A(f'v_rcp_f32 {V(vT0)}, {V(vL)}')
A(f's_lshl_b32 {s.t0}, {s.g}, 3')
A(f's_add_u32 {s.t0}, {s.t0}, {s.j}')
A(f's_lshl_b32 {s.t0}, {s.t0}, 10')
A(f'v_bfe_u32 {V(vT1)}, {V(vSlOff)}, 4, 5')
A(f'v_lshlrev_b32 {V(vT1)}, 4, {V(vT1)}')
A(f'v_bfe_u32 {V(vT2)}, {V(vSlOff)}, 2, 2')
A(f'v_lshl_add_u32 {V(vT1)}, {V(vT2)}, 1, {V(vT1)}')
A(f's_bfe_u32 {s.t1}, {s.h}, 0x10001')
A(f's_lshl_b32 {s.t1}, {s.t1}, 3')
A(f's_add_u32 {s.t0}, {s.t0}, {s.t1}')
A(f's_and_b32 {s.t1}, {s.h}, 4')
A(f's_lshl_b32 {s.t1}, {s.t1}, 7')
A(f's_add_u32 {s.t0}, {s.t0}, {s.t1}')
A(f'v_mul_f32 {V(vT3)}, {V(vT3)}, {V(vT0)}')
A(f'v_cvt_pk_bf16_f32 {V(vT3)}, {V(vT3)}, {V(vT3)}')
A(f'buffer_store_short {V(vT3)}, {V(vT1)}, {srd(sOUT)}, {s.t0} offen')
A('s_branch L_tail')
LB('L_slow')
C('helpers still at work: publish the merged own partial and arrive like a helper')
A(f's_add_u32 {s.slot}, {s.ug}, {OWNSLOT}')
rec_addr(s.slot, s.t1, s.t0)
A(f's_and_b32 {s.t2}, {s.h}, 4')
A(f's_lshl_b32 {s.t2}, {s.t2}, 1')
A(f's_add_u32 {s.t0}, {s.t0}, {s.t2}')
A(f'v_mov_b32 {V(vT4)}, {V(vM)}')
A(f'v_mov_b32 {V(vT5)}, {V(vL)}')
A(f'v_mov_b32 {V(vT0)}, 0')
A(f'buffer_store_dword {V(vT3)}, {V(vSlOff)}, {srd(sWS)}, {s.t1} offen sc1')
A('s_mov_b64 exec, 1')
A(f'buffer_store_dwordx2 {VR(vT4,2)}, {V(vT0)}, {srd(sWS)}, {s.t0} offen sc1')
A('s_mov_b64 exec, -1')
A('s_waitcnt vmcnt(0)')
A('s_barrier')
A(f's_cmp_lg_u32 {s.h}, 0')
A('s_cbranch_scc1 L_tail')
A(f's_mov_b32 {s.i}, 128')
signal(s.ug, s.i)

LB('L_tail')
stamp(6)
A(f's_cmp_eq_u32 {s.seg}, 0')
A('s_cbranch_scc1 L_fin')
A(f's_mov_b32 {s.i}, 0')
A('s_waitcnt vmcnt(0)')
LB('L_chk')
A(f's_cmp_ge_u32 {s.i}, {s.seg}')
A('s_cbranch_scc1 L_fin')
A(f'v_readlane_b32 {s.t3}, {V(vSegB)}, {s.i}')
A(f'v_readlane_b32 {s.t0}, {V(vRet)}, {s.i}')
A(f's_add_u32 {s.i}, {s.i}, 1')
A(f's_and_b32 {s.cb}, {s.t3}, 63')
A(f'v_readlane_b32 {s.t2}, {V(vEx)}, {s.cb}')
A(f's_lshr_b32 {s.cph}, {s.cb}, 5')
A(f's_and_b32 {s.t1}, {s.j}, 6')
A(f's_or_b32 {s.cph}, {s.cph}, {s.t1}')
A(f's_and_b32 {s.t1}, {s.cph}, 3')
A(f's_lshl_b32 {s.t1}, {s.t1}, 3')
A(f's_lshr_b32 {s.t0}, {s.t0}, {s.t1}')
A(f's_and_b32 {s.t0}, {s.t0}, 0xff')
A(f's_bfe_u32 {s.t3}, {s.t3}, 0x80008')
A(f's_add_u32 {s.t0}, {s.t0}, {s.t3}')
A(f's_add_u32 {s.t2}, {s.t2}, 128')
A(f's_cmp_lg_u32 {s.t0}, {s.t2}')
A('s_cbranch_scc1 L_chk')
helper_span(s.cb)
cM, cL = vM, vL
A(f'v_mov_b32 {V(cM)}, {V(vNegInf)}')
A(f'v_mov_b32 {V(cL)}, 0')
for e in range(8):
    A(f'v_mov_b32 {V(cAcc+e)}, 0')
A(f's_add_u32 {s.slot}, {s.cb}, {OWNSLOT}')
A(f's_mov_b32 {s.nblk}, 1')
A(f's_mov_b32 {s.k0}, 0')
LB('L_cchunk')
rec_addr(s.slot, s.t2, s.t0)
A(f'v_and_b32 {V(vT0)}, 15, {V(vLane)}')
A(f'v_cmp_gt_u32 vcc, {s.nblk}, {V(vT0)}')
A(f'v_mov_b32 {V(vT1)}, {OOB_WS}')
A('s_nop 0')
A(f'v_cndmask_b32 {V(vT1)}, {V(vT1)}, {V(vStOff)}, vcc')
A(f'buffer_load_dwordx2 {VR(cSt,2)}, {V(vT1)}, {srd(sWS)}, {s.t0} offen sc1')
for k in range(CH):
    A(f's_cmp_gt_u32 {s.nblk}, {k}')
    A(f's_cselect_b32 {s.t3}, {s.t2}, {OOB_WS}')
    A(f'buffer_load_dwordx4 {VR(cD+8*k,4)}, {V(vPoff)}, {srd(sWS)}, {s.t3} offen sc1')
    A(f'buffer_load_dwordx4 {VR(cD+8*k+4,4)}, {V(vPoff)}, {srd(sWS)}, {s.t3} offen offset:512 sc1')
    A(f's_add_u32 {s.t2}, {s.t2}, 8192')
A(f's_waitcnt vmcnt({2*CH})')
A(f'v_cndmask_b32 {V(cSt)}, {V(vNegInf)}, {V(cSt)}, vcc')
A(f'v_max_f32 {V(vT0)}, {V(cSt)}, {V(cM)}')
row_allreduce('max', vT0)
A(f'v_sub_f32 {V(cW)}, {V(cSt)}, {V(vT0)}')
A(f'v_sub_f32 {V(vT1)}, {V(cM)}, {V(vT0)}')
A(f'v_exp_f32 {V(cW)}, {V(cW)}')
A(f'v_exp_f32 {V(vT1)}, {V(vT1)}')
A(f'v_mov_b32 {V(cM)}, {V(vT0)}')
A(f'v_mul_f32 {V(vT2)}, {V(cW)}, {V(cSt+1)}')
row_allreduce('add', vT2)
A(f'v_fma_f32 {V(cL)}, {V(cL)}, {V(vT1)}, {V(vT2)}')
for e in range(8):
    A(f'v_mul_f32 {V(cAcc+e)}, {V(cAcc+e)}, {V(vT1)}')
for k in range(CH):
    A(f's_waitcnt vmcnt({2*(CH-1-k)})')
    for e in range(8):
        A(f'v_fmac_f32_dpp {V(cAcc+e)}, {V(cW)}, {V(cD+8*k+e)} row_newbcast:{k} {DPPF}')
A(f's_add_u32 {s.slot}, {s.slot0}, {s.k0}')
A(f's_sub_u32 {s.nblk}, {s.n}, {s.k0}')
A(f's_min_u32 {s.nblk}, {s.nblk}, {CH}')
A(f's_mov_b32 {s.t0}, {s.k0}')
A(f's_add_u32 {s.k0}, {s.k0}, {CH}')
A(f's_cmp_lt_u32 {s.t0}, {s.n}')
A('s_cbranch_scc1 L_cchunk')
A(f'v_rcp_f32 {V(vT0)}, {V(cL)}')
A(f's_and_b32 {s.t0}, {s.cb}, 31')
A(f's_lshl_b32 {s.t0}, {s.t0}, 13')
A(f's_lshl_b32 {s.t1}, {s.cph}, 10')
A(f's_add_u32 {s.t0}, {s.t0}, {s.t1}')
for e in range(8):
    A(f'v_mul_f32 {V(cAcc+e)}, {V(cAcc+e)}, {V(vT0)}')
for e in range(4):
    A(f'v_cvt_pk_bf16_f32 {V(vS+e)}, {V(cAcc+2*e)}, {V(cAcc+2*e+1)}')
A(f'buffer_store_dwordx4 {VR(vS,4)}, {V(vOutOff)}, {srd(sOUT)}, {s.t0} offen')
A('s_branch L_chk')
LB('L_fin')
if STAMPS:
    A('s_waitcnt vmcnt(0)')
    stamp(7)
    stamp_flush()
LB('L_end')
A('s_endpgm')
L.append('.section .rodata,"a"')
L.append('.p2align 6')
L.append(f'.amdhsa_kernel {KN}')
L.append(f'  .amdhsa_next_free_vgpr {NVGPR}')
L.append('  .amdhsa_next_free_sgpr 102')
L.append(f'  .amdhsa_accum_offset {(NVGPR+3)//4*4}')
L.append('  .amdhsa_group_segment_fixed_size 0')
L.append('  .amdhsa_kernarg_size 64')
L.append('  .amdhsa_user_sgpr_count 2')
L.append('  .amdhsa_user_sgpr_kernarg_segment_ptr 1')
L.append('  .amdhsa_system_sgpr_workgroup_id_x 1')
L.append('.end_amdhsa_kernel')
open(out, 'w').write('\n'.join(x for x in L if x is not None) + '\n')
print('wrote', out, 'lds', LDS_TOTAL, 'sgpr top', idx)
```
